```python
import torch

def _softmax(x, axis=-1):
    return torch.softmax(x, dim=axis)

def _gelu(x):
    return torch.nn.functional.gelu(x, approximate='tanh')

def _silu(x):
    return torch.nn.functional.silu(x)

def _sigmoid(x):
    return torch.sigmoid(x)

def _layernorm(x, axis=-1, eps=1e-05):
    m = x.mean(dim=axis, keepdim=True)
    v = x.var(dim=axis, keepdim=True, unbiased=False)
    return (x - m) / torch.sqrt(v + eps)

def _scatter_add(tgt, idx, src, axis=0):
    return tgt.clone().index_add_(axis, idx, src)

def _segment_sum(src, seg, n):
    out = torch.zeros((n,) + src.shape[1:], dtype=src.dtype)
    return out.index_add_(0, seg, src)

def _pad(x, pw):
    flat = tuple((v for pair in reversed(pw) for v in pair))
    return torch.nn.functional.pad(x, flat)
kernel_name = 'adaLN_cond__grouped_kv_mqa__dense_activation_silu__prompt'

def setup_inputs():

    _w = lambda a: (lambda t: t.to(torch.bfloat16) if t.is_floating_point() else t)(torch.as_tensor(a))

    def _A_setup():
        B, S, D, H = (1, 2048, 640, 32)
        Dh = D // H
        return {'x': _w((lambda *s: torch.randn(*s, dtype=torch.bfloat16) * 0.05)(B, S, D)), 'wq': _w((lambda *s: torch.randn(*s, dtype=torch.bfloat16) * 0.05)(D, H * Dh)), 'wk': _w((lambda *s: torch.randn(*s, dtype=torch.bfloat16) * 0.05)(D, Dh)), 'wv': _w((lambda *s: torch.randn(*s, dtype=torch.bfloat16) * 0.05)(D, Dh)), 'wo': _w((lambda *s: torch.randn(*s, dtype=torch.bfloat16) * 0.05)(H * Dh, D))}
    _A_in = _A_setup()

    def _B_setup():
        B, S, D, F = (1, 2048, 640, 1536)
        return {'x': _w((lambda *s: torch.randn(*s, dtype=torch.bfloat16) * 0.05)(B, S, D)), 'w1': _w((lambda *s: torch.randn(*s, dtype=torch.bfloat16) * 3.2)(D, F) * D ** (-0.5)), 'w2': _w((lambda *s: torch.randn(*s, dtype=torch.bfloat16) * 0.4)(F, D) * F ** (-0.5))}
    _B_in = _B_setup()
    return {'A_x': _A_in['x'], 'A_wq': _A_in['wq'], 'A_wk': _A_in['wk'], 'A_wv': _A_in['wv'], 'A_wo': _A_in['wo'], 'B_x': _B_in['x'], 'B_w1': _B_in['w1'], 'B_w2': _B_in['w2'], 'c': _w((lambda *s: torch.randn(*s, dtype=torch.bfloat16) * 0.1)(1, 640) * 8.0), 'w_mod': _w((lambda *s: torch.randn(*s, dtype=torch.bfloat16) * 0.1)(640, 6 * 640) * 640 ** (-0.5) * 8.0)}

def reference(A_x, A_wq, A_wk, A_wv, A_wo, B_x, B_w1, B_w2, c, w_mod):

    def _A_ref(x, wq, wk, wv, wo):
        B, S, D = x.shape
        H = 32
        Dh = D // H
        q = (lambda x, *d: x.permute(*d))((x @ wq).reshape(B, S, H, Dh), 0, 2, 1, 3)
        k = x @ wk
        v = x @ wv
        scores = torch.einsum('bhqd,bkd->bhqk', q, k) * Dh ** (-0.5)
        p = _softmax(scores, axis=-1)
        o = torch.einsum('bhqk,bkd->bhqd', p, v)
        return (lambda x, *d: x.permute(*d))(o, 0, 2, 1, 3).reshape(B, S, H * Dh) @ wo

    def _B_ref(x, w1, w2):
        h = torch.einsum('bsd,df->bsf', x, w1)
        h = _silu(h)
        out = torch.einsum('bsf,fd->bsd', h, w2)
        return out
    x = A_x
    mod = (_silu(c) @ w_mod).reshape(c.shape[0], 6, 1, -1)
    sa, ca, ga, sb, cb, gb = (mod[:, 0].clone(), mod[:, 1].clone(), mod[:, 2].clone(), mod[:, 3].clone(), mod[:, 4].clone(), mod[:, 5].clone())
    h = _layernorm(x, axis=-1) * (1 + ca) + sa
    x = x + ga * _A_ref(h, A_wq, A_wk, A_wv, A_wo)
    h = _layernorm(x, axis=-1) * (1 + cb) + sb
    x = x + gb * _B_ref(h, B_w1, B_w2)
    return x
```

```python
import re

def v(r, n=1): return f"v{r}" if n == 1 else f"v[{r}:{r+n-1}]"
def s(r, n=1): return f"s{r}" if n == 1 else f"s[{r}:{r+n-1}]"

class Asm:
    def __init__(self):
        self.lines = []
        self.vmq = []
        self.dsq = []
        self.uid = 0
    def __call__(self, text):
        for ln in text.split("\n"):
            ln = ln.strip()
            if ln: self.lines.append(ln)
    def label(self, name): self.lines.append(name + ":")
    def newlabel(self, base):
        self.uid += 1
        return f"L_{base}_{self.uid}"
    def c(self, text): self.lines.append("; " + text)
    def vm(self, text, tag=None, optional=False, track=True):
        self(text)
        if track: self.vmq.append((tag, optional))
    def ds(self, text, tag=None, optional=False):
        self(text); self.dsq.append((tag, optional))
    def _count_after(self, q, tag):
        idx = [i for i, (t, o) in enumerate(q) if t == tag]
        if not idx: return None
        last = idx[-1]
        n = sum(1 for (t, o) in q[last+1:] if not o)
        del q[:last+1]
        return n
    def wait(self, vm=None, ds=None):
        parts = []
        if vm is not None:
            n = self._count_after(self.vmq, vm)
            if n is not None: parts.append(f"vmcnt({min(n,63)})")
        if ds is not None:
            n = self._count_after(self.dsq, ds)
            if n is not None: parts.append(f"lgkmcnt({min(n,15)})")
        if parts: self("s_waitcnt " + " ".join(parts))
    def wait_vm0(self): self("s_waitcnt vmcnt(0)"); self.vmq = []
    def wait_ds0(self): self("s_waitcnt lgkmcnt(0)"); self.dsq = []
    def wait0(self): self("s_waitcnt vmcnt(0) lgkmcnt(0)"); self.vmq = []; self.dsq = []
    def text(self): return "\n".join(("" if l.endswith(":") else "    ") + l for l in self.lines) + "\n"

REG = re.compile(r"^(-|\|)?(abs\()?([vsa])(?:(\d+)|\[(\d+):(\d+)\])\)?\|?$")
def regs_of(tok):
    tok = tok.strip()
    if tok in ("vcc",): return {("s", 106), ("s", 107)}
    if tok == "exec": return {("s", 126), ("s", 127)}
    if tok == "m0": return {("s", 124)}
    m = REG.match(tok)
    if not m: return set()
    k = m.group(3)
    if m.group(4) is not None: return {(k, int(m.group(4)))}
    return {(k, i) for i in range(int(m.group(5)), int(m.group(6)) + 1)}

TRANS = ("v_exp_f32", "v_log_f32", "v_rcp_f32", "v_rsq_f32", "v_sqrt_f32", "v_sin_f32", "v_cos_f32")
class I:
    def __init__(self, line):
        self.line = line
        body = line.split(";")[0].strip()
        self.is_label = body.endswith(":")
        self.empty = (body == "" or body.startswith(".") )
        if self.is_label or self.empty:
            self.mn = ""; self.ops = []; self.kind = "none"; self.w = set(); self.r = set(); return
        sp = body.split(None, 1)
        self.mn = mn = sp[0]
        rest = sp[1] if len(sp) > 1 else ""
        ops = []; depth = 0; cur = ""
        for ch in rest:
            if ch in "[(": depth += 1
            if ch in "])": depth -= 1
            if ch == "," and depth == 0: ops.append(cur.strip()); cur = ""
            else: cur += ch
        if cur.strip(): ops.append(cur.strip())
        self.mods = ""
        if ops:
            p = ops[-1].split(None, 1)
            ops[-1] = p[0]
            if len(p) > 1: self.mods = p[1]
        self.ops = ops
        R = [regs_of(o) for o in ops]
        self.w = set(); self.r = set(); self.srcC = set(); self.srcAB = set(); self.passes = 0
        self.dpp = "_dpp" in mn
        if mn.startswith("v_mfma"):
            self.kind = "mfma"; self.w = R[0]; self.srcAB = R[1] | R[2]; self.srcC = R[3]; self.r = self.srcAB | self.srcC
            self.passes = 8 if "32x32" in mn else 4
        elif mn.startswith("v_cmp"):
            self.kind = "valu"; self.w = R[0]; self.r = set().union(*R[1:])
        elif mn.startswith("v_readfirstlane") or mn.startswith("v_readlane"):
            self.kind = "valu"; self.w = R[0]; self.r = set().union(*R[1:])
        elif mn.startswith("v_permlane"):
            self.kind = "valu"; self.w = R[0] | R[1]; self.r = R[0] | R[1]
        elif mn.startswith("v_"):
            self.kind = "valu"; self.w = set(R[0]); self.r = set().union(*R[1:]) if len(R) > 1 else set()
            if mn.startswith(("v_fmac", "v_dot2c")) or self.dpp: self.r |= R[0]
            if mn.startswith(("v_add_co", "v_sub_co", "v_addc_co")): self.w |= R[1]
            if mn.startswith("v_cndmask") and len(ops) == 3: self.r |= regs_of("vcc")
        elif mn.startswith("buffer_") or mn.startswith("global_"):
            self.kind = "vmem"
            lds = " lds" in (" " + self.mods)
            if mn.startswith("buffer_load") and not lds: self.w = R[0]; self.r = set().union(*R[1:])
            elif mn.startswith("global_load") and not lds: self.w = R[0]; self.r = set().union(*R[1:])
            else: self.r = set().union(*R) if R else set()
            if lds: self.r |= regs_of("m0")
            self.lds = lds
            self.store = "store" in mn
            self.sdata = (R[0] if mn.startswith("buffer_store") else set())
        elif mn.startswith("ds_"):
            self.kind = "ds"
            if mn.startswith("ds_read") or mn.startswith("ds_bpermute") or "rtn" in mn: self.w = R[0]; self.r = set().union(*R[1:])
            else: self.r = set().union(*R)
        elif mn.startswith("s_"):
            self.kind = "salu"
            if mn.startswith(("s_cmp", "s_cbranch", "s_branch", "s_waitcnt", "s_nop", "s_barrier", "s_endpgm", "s_setprio", "s_sleep")):
                self.r = set().union(*R) if R else set()
            else:
                self.w = R[0] if R else set(); self.r = set().union(*R[1:]) if len(R) > 1 else set()
                if "saveexec" in mn: self.w |= regs_of("exec")
        else:
            raise ValueError("unknown instr " + line)
        self.trans = mn.startswith(TRANS)
        self.dot = mn.startswith("v_dot")
    def states(self):
        if self.kind == "none": return 0
        if self.mn == "s_nop": return int(self.ops[0]) + 1
        return 1

def required(p, c):
    need = 0
    vw = {x for x in p.w if x[0] == "v"}; sw = {x for x in p.w if x[0] == "s"}
    if p.kind == "valu":
        if c.kind == "mfma" and vw & c.r: need = max(need, 2)
        if c.kind == "valu":
            if p.trans and not c.trans and vw & c.r: need = max(need, 1)
            if c.mn.startswith("v_permlane") and vw & c.r: need = max(need, 2)
            if c.dpp and vw & regs_of(c.ops[1]): need = max(need, 2)
            if c.dpp and vw & c.r: need = max(need, 2)
            if c.mn.startswith(("v_readfirstlane", "v_readlane")) and vw & c.r: need = max(need, 1)
            if sw & c.r: need = max(need, 2)
            if p.dot and vw & (c.r | c.w):
                if c.mn == p.mn and not (vw & (regs_of(c.ops[1]) | regs_of(c.ops[2]))): pass
                else: need = max(need, 3)
        if p.dot and c.kind in ("mfma", "vmem", "ds") and vw & (c.r | c.w): need = max(need, 3)
        if p.trans and c.kind in ("vmem", "ds") and vw & c.r: need = max(need, 1)
        if c.kind == "vmem" and sw & c.r: need = max(need, 5)
    if p.kind == "mfma":
        big = {4: 8, 8: 12}[p.passes]; ov = {4: 6, 8: 10}[p.passes]; war = {4: 3, 8: 7}[p.passes]
        if c.kind == "mfma":
            if vw & c.srcAB: need = max(need, big)
            if vw & c.srcC and not (c.srcC == vw and c.passes == p.passes): need = max(need, ov)
            if vw & c.w and not (c.w == vw) : need = max(need, ov)
        elif c.kind in ("valu", "vmem", "ds"):
            if vw & (c.r | c.w): need = max(need, big)
            if c.kind == "valu" and p.srcC & c.w: need = max(need, war)
    if p.kind == "salu" and ("s", 124) in p.w and c.kind == "vmem" and getattr(c, "lds", False): need = max(need, 1)
    if p.kind == "vmem" and p.store and ("x4" in p.mn or "x3" in p.mn) and c.kind == "valu" and p.sdata & c.w: need = max(need, 2)
    return need

def fix_hazards(lines, verbose=False):
    out = []; ins = []
    added = 0
    for ln in lines:
        c = I(ln)
        if c.kind != "none":
            dist = 0; need = 0
            for p in reversed(ins):
                if dist >= 20: break
                if p.kind != "none":
                    r = required(p, c)
                    if r - dist > need: need = r - dist
                    if p.mn in ("s_branch", "s_endpgm"): break
                dist += p.states()
            if need > 0:
                nop = f"s_nop {need-1}"
                if verbose: print(f"hazard: +{need} before '{ln}'")
                out.append(nop); ins.append(I(nop)); added += need
        out.append(ln); ins.append(c)
    labels = {i.line.split(":")[0].strip(): k for k, i in enumerate(ins) if i.is_label}
    errs = []
    for k, b in enumerate(ins):
        if b.mn.startswith(("s_cbranch", "s_branch")):
            t = labels[b.ops[0]]
            back = []; d = 0; q = k
            while q >= 0 and d < 20:
                back.append((ins[q], d)); d += ins[q].states(); q -= 1
                if q >= 0 and ins[q].mn in ("s_branch", "s_endpgm"): break
            fd = 0; q = t
            while q < len(ins) and fd < 20:
                c = ins[q]
                if c.kind != "none":
                    for p, pd in back:
                        if p.kind == "none" : continue
                        gap = (pd - p.states() if False else pd) + fd
                        r = required(p, c)
                        if r > gap: errs.append(f"branch-path hazard: '{p.line}' -> [{b.line}] -> '{c.line}' need {r} have {gap}")
                    if c.mn in ("s_branch", "s_endpgm"): break
                fd += c.states(); q += 1
    return out, added, errs

def trace(ins, labels, wg, wave, same=1, force=()):
    S = {2: wg}; scc = None; k = 0; out = []; M = 0xffffffff
    def val(t):
        if re.fullmatch(r"s\d+", t): return S.get(int(t[1:]))
        if t == "m0": return S.get(124)
        try: return int(t, 0) & M
        except ValueError: return None
    def put(t, x):
        if re.fullmatch(r"s\d+", t): S[int(t[1:])] = x if x is None else x & M
        elif t == "m0": S[124] = x
        else:
            for (_, r) in regs_of(t): S[r] = None
    steps = 0; forced = set()
    while k < len(ins):
        c = ins[k]; steps += 1
        assert steps < 200000, "trace does not end"
        if c.kind == "none": k += 1; continue
        out.append(c)
        mn = c.mn; o = c.ops
        if mn == "s_endpgm": break
        if mn == "s_branch": k = labels[o[0]]; continue
        if mn.startswith("s_cbranch_scc"):
            if scc is None: raise ValueError("unknown scc at " + c.line + f" (line {k})")
            if scc == int(mn[-1]): k = labels[o[0]]; continue
        elif mn == "s_cbranch_vccz": k = labels[o[0]]; continue
        elif mn == "s_cbranch_vccnz":
            if o[0] in force and o[0] not in forced: forced.add(o[0]); k = labels[o[0]]; continue
        elif mn.startswith("v_readfirstlane"):
            put(o[0], wave if "wave" in c.line else (same if "same" in c.line else None))
        elif mn.startswith("s_cmp_"):
            a, b = val(o[0]), val(o[1])
            if a is None or b is None: scc = None
            else: scc = int({"eq": a == b, "lg": a != b, "lt": a < b, "le": a <= b, "gt": a > b, "ge": a >= b}[mn.split("_")[2]])
            if "same" in c.line: scc = same
        elif mn == "s_cselect_b32": put(o[0], None if scc is None else val(o[1] if scc else o[2]))
        elif mn == "s_mov_b32": put(o[0], val(o[1]))
        elif mn in ("s_add_u32", "s_sub_u32", "s_mul_i32", "s_lshl_b32", "s_lshr_b32", "s_and_b32", "s_or_b32", "s_xor_b32", "s_min_u32"):
            a, b = val(o[1]), val(o[2])
            if a is None or b is None: put(o[0], None); r = None
            else:
                r = {"s_add_u32": a + b, "s_sub_u32": a - b, "s_mul_i32": a * b, "s_lshl_b32": a << (b & 31), "s_lshr_b32": a >> (b & 31),
                     "s_and_b32": a & b, "s_or_b32": a | b, "s_xor_b32": a ^ b, "s_min_u32": min(a, b)}[mn]
                put(o[0], r)
            if mn != "s_mul_i32":
                scc = None if r is None else (int(r > M) if mn == "s_add_u32" else int(r < 0) if mn == "s_sub_u32" else int((r & M) != 0))
        elif c.kind == "salu" or c.kind == "valu":
            for (t, r) in c.w:
                if t == "s": S[r] = None
            if c.kind == "salu" and c.w and not mn.startswith(("s_mov", "s_load", "s_mem", "s_getreg")): scc = None
        k += 1
    return out

def check_trace(tr):
    errs = []; vm = []; ds = []; nbar = 0
    for k, c in enumerate(tr):
        if c.mn == "s_barrier": nbar += 1
        if c.mn == "s_waitcnt":
            m = re.search(r"vmcnt\((\d+)\)", c.line)
            if m and int(m.group(1)) < len(vm): vm = vm[len(vm) - int(m.group(1)):]
            m = re.search(r"lgkmcnt\((\d+)\)", c.line)
            if m and int(m.group(1)) < len(ds): ds = ds[len(ds) - int(m.group(1)):]
        else:
            use = c.r | c.w
            for q in (vm, ds):
                for p in q:
                    if p.w & use and not (c.kind == p.kind and not (p.w & c.r)):
                        errs.append(f"wait: '{c.line}' touches pending '{p.line}'")
            if c.kind == "vmem": vm.append(c)
            if c.kind == "ds" or c.mn.startswith(("s_load", "s_memtime", "s_memrealtime")): ds.append(c)
            if len(vm) > 63: errs.append(f"vmcnt overflow at '{c.line}'"); vm = vm[1:]
        dist = 0; q = k - 1
        while q >= 0 and dist < 20:
            r = required(tr[q], c)
            if r > dist: errs.append(f"hazard: '{tr[q].line}' -> '{c.line}' need {r} have {dist}")
            dist += tr[q].states(); q -= 1
    return errs, nbar

def check_all(lines, force_sets=((),)):
    ins = [I(l) for l in lines]
    labels = {i.line.split(":")[0].strip(): k for k, i in enumerate(ins) if i.is_label}
    errs = set(); info = {}
    for wg in (0, 8, 16+1, 24+2, 32+3, 40+4, 48, 56, 255, 250):
        bars = set()
        for wave in range(8):
            for same in (0, 1):
                for force in force_sets:
                    tr = trace(ins, labels, wg, wave, same, force)
                    e, nb = check_trace(tr); errs.update(e)
                    if not force: bars.add(nb); info[(wg, wave)] = len(tr)
        if len(bars) != 1: errs.add(f"barrier count differs in wg {wg}: {bars}")
    return sorted(errs), info
```

```python
import sys, math, struct, os
EXP = os.environ.get('EXP', '').split(',')
from dsl import *

NAME = "adaLN_cond__grouped_kv_mqa__dense_activation_silu__prompt"
def f2u(x): return struct.unpack("<I", struct.pack("<f", x))[0]

EPOCH, MODG, PFF, KVD, KVF = 0, 0x1000, 0xA000, 0x10000, 0x38000 + 0x2000
GRP0, GRPSZ = 0x50000, 368640
O_OFF, XA_OFF, ST_OFF, H1_OFF = 0, 81920, 163840, 172032
DBG = 0xC00000
KVT = 2624
RING, SLOT = 102400, 11264
AB = RING + 2*SLOT; KVX = AB + 2560
WKV = 136192
MISC = 161792; PART = MISC; CNT = MISC + 384; STX = MISC + 512
TT = 153600; TA2 = TT; TSB = TT + 1280; TGA = TT + 2560; TGB = TT + 2880; TRM = TT + 3584
UREG = 81920
R_WS, R_X, R_WQ, R_WO, R_W1, R_W2, R_OUT, R_WKV, R_WM, R_C = 32, 36, 40, 44, 48, 52, 56, 60, 64, 68
sG, sJ, sW, sTAG, sSAME, sSPIN, sGB, sCG = 72, 73, 74, 75, 76, 77, 78, 79
sJ160 = 30; sXCC = 31
T0 = 80
vL, vL16, vP, vTR = 0, 1, 2, 7

class Gen:
    def __init__(self, stop=None, stamps=False):
        self.a = Asm(); self.stop = stop; self.stamps = stamps; self.nstamp = 0; self.force_sets = [()]; self.names = ['start']

    def stamp(self, name):
        if not self.stamps: return
        only = os.environ.get("ONLY")
        if only and not any(name.startswith(o) for o in only.split(",")): return
        a = self.a
        self.names.append(name.replace(" ", "_"))
        a.c(f"stamp {self.nstamp}: {name}")
        a(f"s_memtime s[100:101]")
        a.wait_ds0()
        a(f"s_sub_u32 s{4+self.nstamp}, s100, s97")
        self.nstamp += 1
        assert self.nstamp <= 24
    def dump_stamps(self):
        if not self.stamps: return
        a = self.a
        a(f"s_lshl_b32 s80, s2, 3\ns_add_u32 s80, s80, s{sW}\ns_lshl_b32 s80, s80, 7\ns_add_u32 s80, s80, {DBG + 0x1000000}")
        a("v_mov_b32 v9, 0\ns_memtime s[98:99]\ns_memrealtime s[100:101]\ns_waitcnt lgkmcnt(0)\ns_sub_u32 s98, s98, s97\ns_sub_u32 s100, s100, s4\nv_mov_b32 v8, s100")
        a(f"buffer_store_dword v8, v9, s[{R_WS}:{R_WS+3}], s80 offen offset:120\nv_mov_b32 v8, s98")
        a(f"buffer_store_dword v8, v9, s[{R_WS}:{R_WS+3}], s80 offen offset:124")
        for i in range(self.nstamp):
            a(f"v_mov_b32 v8, s{4+i}")
            a(f"buffer_store_dword v8, v9, s[{R_WS}:{R_WS+3}], s80 offen offset:{4*i}")
        a.wait_vm0()
    def dump(self, regs, slot):
        a = self.a
        n = len(regs)
        a(f"s_lshl_b32 s80, s2, 3\ns_add_u32 s80, s80, s{sW}\ns_mul_i32 s80, s80, {n*256}\ns_add_u32 s80, s80, {DBG + slot*0x200000}")
        a(f"v_lshlrev_b32 v9, 2, v{vL}")
        a("s_nop 15")
        for i, r in enumerate(regs):
            a(f"buffer_store_dword v{r}, v9, s[{R_WS}:{R_WS+3}], s80 offen")
            a("s_add_u32 s80, s80, 256")
        a.wait_vm0()

    def srd(self, r, ptr, nbytes):
        self.a(f"s_mov_b32 s{r}, s{ptr}\ns_mov_b32 s{r+1}, s{ptr+1}\ns_mov_b32 s{r+2}, {nbytes}\ns_mov_b32 s{r+3}, 0x20000")

    def spin_tail(self, loop, cond="vccnz"):
        a = self.a
        out = a.newlabel("spinout")
        if cond == "vccnz":
            a(f"s_cbranch_vccz {out}")
        else:
            a(f"s_cbranch_scc0 {out}")
        a(f"s_sub_u32 s{sSPIN}, s{sSPIN}, 1\ns_cbranch_scc1 {out}_x\ns_branch {loop}")
        a.label(out + "_x")
        a(f"s_mov_b32 s{sSPIN}, 0")
        a.label(out)

    def n80_block(self, srd, m0_s, soff_s, tag=None, optional=False):
        a = self.a
        for u in range(5):
            a(f"s_mov_b32 m0, s{m0_s}\ns_add_u32 s{m0_s}, s{m0_s}, 1024")
            a.vm(f"buffer_load_dwordx4 v{vP+u}, s[{srd}:{srd+3}], s{soff_s} offen lds", tag, optional)

    def reduce_g4_pair(self, A, B, t):
        a = self.a
        a(f"v_permlane16_swap_b32 v{A}, v{B}")
        a(f"v_add_f32 v{A}, v{A}, v{B}")
        a(f"v_mov_b32 v{t}, v{A}")
        a(f"v_permlane32_swap_b32 v{A}, v{t}")
        a(f"v_add_f32 v{A}, v{A}, v{t}")
        a(f"v_mov_b32 v{B}, v{A}")
        a(f"v_permlane16_swap_b32 v{A}, v{B}")

    def prologue(self):
        a = self.a
        XR, XN, ABT, DT, WF, ACC, AKV = 16, 56, 136, 152, 160, 200, 220
        MW, MC, MA = 228, 244, 246
        a("s_cmp_ge_u32 s2, 256\ns_cbranch_scc1 L_end")
        if self.stamps: a("s_memrealtime s[100:101]\ns_memtime s[98:99]")
        a("s_load_dwordx16 s[4:19], s[0:1], 0\ns_load_dwordx8 s[20:27], s[0:1], 64\ns_load_dwordx2 s[28:29], s[0:1], 96")
        a(f"v_lshrrev_b32 v8, 6, v0\nv_and_b32 v{vL}, 63, v0")
        a(f"v_readfirstlane_b32 s{sW}, v8 ; wave")
        a(f"""s_and_b32 s80, s2, 7
              s_lshr_b32 s81, s2, 3
              s_lshr_b32 s82, s81, 3
              s_lshl_b32 s83, s80, 2
              s_add_u32 s{sG}, s83, s82
              s_and_b32 s{sJ}, s81, 7
              s_lshr_b32 s82, s81, 2
              s_lshl_b32 s82, s82, 5
              s_add_u32 s82, s82, s83
              s_and_b32 s81, s81, 3
              s_add_u32 s{sCG}, s82, s81
              s_mul_i32 s{sGB}, s{sG}, {GRPSZ}
              s_add_u32 s{sGB}, s{sGB}, {GRP0}
              s_mul_i32 s{sJ160}, s{sJ}, 160
              s_mov_b32 s{sSPIN}, 0x40000
              s_getreg_b32 s{sXCC}, hwreg(HW_REG_XCC_ID)
              s_and_b32 s{sXCC}, s{sXCC}, 15""")
        a(f"v_lshlrev_b32 v{vL16}, 4, v{vL}")
        a(f"""v_lshrrev_b32 v8, 1, v{vL}
              s_lshl_b32 s80, s{sW}, 5
              v_add_u32 v8, s80, v8
              v_lshlrev_b32 v9, 3, v8
              v_mul_u32_u24 v8, 30720, v8
              v_and_b32 v10, 1, v{vL}
              v_lshlrev_b32 v10, 4, v10
              s_lshl_b32 s81, s{sCG}, 5
              v_add3_u32 v8, v8, v10, s81
              v_mov_b32 v11, 0
              v_mov_b32 v12, {CNT}""")
        a.wait_ds0()
        self.srd(R_WS, 28, 0x2000000 if (self.stamps or self.stop) else GRP0 + 32*GRPSZ)
        self.srd(R_WM, 22, 640*3840*2 if 'nomod' not in EXP else 0); self.srd(R_C, 20, 1280)
        if self.stamps: a("s_mov_b32 s96, s100\ns_mov_b32 s97, s98")
        a.vm(f"buffer_load_dword v13, v11, s[{R_WS}:{R_WS+3}], 0 offen sc1", "epoch")
        a(f"s_cmp_lt_u32 s{sW}, 5\ns_cselect_b32 s82, s{sCG}, 255\ns_cmp_lt_u32 s82, 240\ns_cselect_b32 s83, 1, 0")
        a("s_cbranch_scc0 L_skip_modld")
        a.vm(f"buffer_load_dwordx2 v[{MC}:{MC+1}], v9, s[{R_C}:{R_C+3}], 0 offen", "mod", optional=True)
        for r in range(4):
            a(f"s_mov_b32 s84, {7680*r}")
            a.vm(f"buffer_load_dwordx4 v[{MW+4*r}:{MW+4*r+3}], v8, s[{R_WM}:{R_WM+3}], s84 offen", "mod", optional=True)
        a.label("L_skip_modld")
        self.srd(R_X, 4, 2048*1280)
        a(f"""v_and_b32 v8, 15, v{vL}
              v_lshrrev_b32 v9, 4, v{vL}
              v_mul_u32_u24 v10, 1280, v8
              v_lshl_add_u32 v10, v9, 4, v10
              s_lshr_b32 s84, s{sW}, 1
              s_lshl_b32 s85, s{sG}, 2
              s_add_u32 s85, s85, s84
              s_mul_i32 s85, s85, {16*1280}
              s_and_b32 s86, s{sW}, 1
              s_mul_i32 s87, s86, 640
              s_add_u32 s85, s85, s87""")
        if 'nox' in EXP: a(f"s_mov_b32 s{R_X+2}, 0")
        for k in range(10):
            a.vm(f"buffer_load_dwordx4 v[{XR+4*k}:{XR+4*k+3}], v10, s[{R_X}:{R_X+3}], s85 offen offset:{64*k}", "x")
        a.ds(f"ds_write_b32 v12, v11")
        a.ds(f"ds_write_b32 v12, v11 offset:4")
        self.srd(R_WQ, 6, 640*1280); self.srd(R_WO, 12, 640*1280); self.srd(R_W1, 16, 640*3072); self.srd(R_W2, 18, 1536*1280)
        self.srd(R_OUT, 24, 2048*1280)
        a(f"s_cmp_lt_u32 s{sJ}, 4\ns_cselect_b32 s{R_WKV}, s8, s10\ns_cselect_b32 s{R_WKV+1}, s9, s11\ns_mov_b32 s{R_WKV+2}, 25600\ns_mov_b32 s{R_WKV+3}, 0x20000")
        if self.stamps: a("s_mov_b32 s4, s96"); self.nstamp = 1
        for u in range(5):
            a(f"""v_add_u32 v12, {64*u}, v{vL}
                  v_mul_u32_u24 v14, 6554, v12
                  v_lshrrev_b32 v14, 16, v14
                  v_mul_u32_u24 v15, 10, v14
                  v_sub_u32 v12, v12, v15
                  v_bfe_u32 v15, v14, 2, 2
                  v_lshlrev_b32 v15, 3, v15
                  v_and_b32 v{vP+u}, 3, v14
                  v_add_u32 v15, v15, v{vP+u}
                  v_lshrrev_b32 v14, 4, v14
                  v_lshl_add_u32 v15, v14, 2, v15
                  v_mul_u32_u24 v15, 1280, v15
                  v_lshl_add_u32 v{vP+u}, v12, 4, v15""")
        a(f"""v_lshrrev_b32 v12, 2, v{vL}
              v_mul_u32_u24 v12, 160, v12
              v_and_b32 v14, 3, v{vL}
              v_lshl_add_u32 v{vTR}, v14, 3, v12""")
        if 'nodma' in EXP: a(f"s_mov_b32 s{R_WQ+2}, 0\ns_mov_b32 s{R_WKV+2}, 0")
        a.wait_ds0()
        self.stamp("issued")
        a("s_barrier")
        a(f"s_cmp_lt_u32 s{sW}, 5\ns_cbranch_scc1 L_skip_dma0")
        a(f"s_cmp_lg_u32 s{sW}, 5\ns_cbranch_scc1 L_skip_wkv")
        a(f"s_mov_b32 s88, {WKV}\ns_mov_b32 s89, 0")
        a.label("L_wkv")
        a(f"s_mov_b32 m0, s88\ns_add_u32 s88, s88, 1024")
        a.vm(f"buffer_load_dwordx4 v{vL16}, s[{R_WKV}:{R_WKV+3}], s89 offen lds", "dma0", optional=True)
        a(f"s_add_u32 s89, s89, 1024\ns_cmp_lt_u32 s89, 25600\ns_cbranch_scc1 L_wkv")
        a.label("L_skip_wkv")
        a(f"""s_cmp_eq_u32 s{sW}, 5
              s_cselect_b32 s88, 0, 3
              s_cselect_b32 s90, 3, 12
              s_cmp_eq_u32 s{sW}, 7
              s_cselect_b32 s88, 12, s88
              s_cselect_b32 s90, 20, s90
              s_mul_i32 s89, s88, 40960
              s_add_u32 s89, s89, s{sJ160}
              s_mul_i32 s88, s88, 5120
              s_mul_i32 s90, s90, 5120""")
        a.label("L_wq")
        self.n80_block(R_WQ, 88, 89, "dma0", optional=True)
        a("s_add_u32 s89, s89, 40960\ns_cmp_lt_u32 s88, s90\ns_cbranch_scc1 L_wq")
        a("s_waitcnt vmcnt(40)\ns_branch L_tag")
        a.label("L_skip_dma0")
        a("s_waitcnt vmcnt(10)")
        a.label("L_tag")
        self.stamp("tag")
        a(f"v_readfirstlane_b32 s{sTAG}, v13")
        a(f"s_mul_i32 s{sTAG}, s{sTAG}, 1664525\ns_add_u32 s{sTAG}, s{sTAG}, 1013904223")
        a("s_cmp_eq_u32 s83, 0\ns_cbranch_scc1 L_skip_mod")
        c0 = 8
        a(f"""v_lshlrev_b32 v8, 16, v{MC}
              v_and_b32 v9, 0xffff0000, v{MC}
              v_lshlrev_b32 v10, 16, v{MC+1}
              v_and_b32 v11, 0xffff0000, v{MC+1}""")
        for r in range(4): a(f"v_mul_f32 v{12+r}, {hex(f2u(-math.log2(math.e)))}, v{8+r}")
        for r in range(4): a(f"v_exp_f32 v{12+r}, v{12+r}")
        for r in range(4): a(f"v_add_f32 v{12+r}, 1.0, v{12+r}")
        for r in range(4): a(f"v_rcp_f32 v{12+r}, v{12+r}")
        for r in range(4): a(f"v_mul_f32 v{8+r}, v{8+r}, v{12+r}")
        for r in range(4):
            for d in range(4):
                w = MW + 4*r + d
                a(f"v_lshlrev_b32 v12, 16, v{w}\nv_and_b32 v13, 0xffff0000, v{w}")
                if r == 0: a(f"v_mul_f32 v{MA+2*d}, v8, v12\nv_mul_f32 v{MA+2*d+1}, v8, v13")
                else: a(f"v_fmac_f32 v{MA+2*d}, v{8+r}, v12\nv_fmac_f32 v{MA+2*d+1}, v{8+r}, v13")
        for i in range(4): a(f"v_permlane32_swap_b32 v{MA+i}, v{MA+4+i}")
        for i in range(4): a(f"v_add_f32 v{MA+i}, v{MA+i}, v{MA+4+i}")
        for i in range(2): a(f"v_permlane16_swap_b32 v{MA+i}, v{MA+2+i}")
        for i in range(2): a(f"v_add_f32 v{MA+i}, v{MA+i}, v{MA+2+i}")
        for m in ("row_ror:8", "row_ror:4", "quad_perm:[2,3,0,1]"):
            for i in range(2): a(f"v_add_f32_dpp v{MA+i}, v{MA+i}, v{MA+i} {m} row_mask:0xf bank_mask:0xf")
        a(f"""v_and_b32 v8, 1, v{vL}
              v_lshlrev_b32 v8, 5, v8
              v_bfe_u32 v9, v{vL}, 4, 1
              v_lshl_add_u32 v8, v9, 3, v8
              v_lshrrev_b32 v9, 5, v{vL}
              v_lshl_add_u32 v8, v9, 4, v8
              s_lshl_b32 s84, s{sW}, 6
              s_add_u32 s84, s84, {PART}
              v_add_u32 v8, s84, v8
              v_mov_b32 v10, {CNT}
              v_mov_b32 v11, 1
              s_mov_b32 exec_lo, 0x00030003
              s_mov_b32 exec_hi, 0x00030003""")
        a.ds(f"ds_write_b64 v8, v[{MA}:{MA+1}]")
        a("s_mov_b64 exec, 1")
        a.wait_ds0()
        a.ds("ds_add_u32 v10, v11")
        a("s_mov_b64 exec, -1")
        a(f"s_cmp_lg_u32 s{sW}, 0\ns_cbranch_scc1 L_skip_mod")
        a.label("L_modspin")
        a.ds("ds_read_b32 v11, v10"); a.wait_ds0()
        a("v_cmp_gt_u32 vcc, 5, v11")
        self.spin_tail("L_modspin")
        a(f"v_lshlrev_b32 v8, 2, v{vL}\nv_add_u32 v8, {PART}, v8\ns_mov_b64 exec, 0xffff")
        for w in range(5): a.ds(f"ds_read_b32 v{MA+w}, v8 offset:{64*w}")
        a(f"v_lshlrev_b32 v8, 3, v{vL}\ns_lshl_b32 s84, s{sCG}, 7\ns_add_u32 s84, s84, {MODG}\nv_mov_b32 v11, s{sTAG}")
        a.wait_ds0()
        a(f"v_add_f32 v{MA}, v{MA}, v{MA+1}\nv_add_f32 v{MA+2}, v{MA+2}, v{MA+3}\nv_add_f32 v{MA}, v{MA}, v{MA+4}\nv_add_f32 v10, v{MA}, v{MA+2}")
        a.vm(f"buffer_store_dwordx2 v[10:11], v8, s[{R_WS}:{R_WS+3}], s84 offen sc1", "modst", optional=True)
        a("s_mov_b64 exec, -1")
        self.stamp("mod published")
        a("s_waitcnt vmcnt(1)\ns_branch L_xin")
        a.label("L_skip_mod")
        a(f"s_cmp_ge_u32 s{sW}, 5\ns_cbranch_scc1 L_xin")
        a("s_waitcnt vmcnt(0)")
        a.label("L_xin")
        a.wait_ds0(); a.vmq = []
        self.stamp("x landed")
        a("s_mov_b32 s84, 0x3f803f80")
        for k in range(40):
            if k == 0: a(f"v_dot2_f32_bf16 v8, v{XR}, s84, 0\nv_dot2_f32_bf16 v9, v{XR}, v{XR}, 0")
            else: a(f"v_dot2_f32_bf16 v8, v{XR+k}, s84, v8\nv_dot2_f32_bf16 v9, v{XR+k}, v{XR+k}, v9")
        self.reduce_g4_pair(8, 9, 10)
        a(f"""v_and_b32 v10, 15, v{vL}
              v_lshlrev_b32 v10, 3, v10
              s_lshl_b32 s84, s{sW}, 7
              s_add_u32 s84, s84, {STX}
              v_add_u32 v11, s84, v10
              s_xor_b32 s84, s84, 128
              v_add_u32 v10, s84, v10""")
        a.ds("ds_write_b64 v11, v[8:9]"); a.wait_ds0()
        a("s_barrier")
        a.ds("ds_read_b64 v[12:13], v10"); a.wait_ds0()
        a(f"""v_add_f32 v8, v8, v12
              v_add_f32 v9, v9, v13
              v_mul_f32 v8, {hex(f2u(1/640))}, v8
              v_mul_f32 v9, {hex(f2u(1/640))}, v9
              v_fma_f32 v9, -v8, v8, v9
              v_max_f32 v9, 0, v9
              v_add_f32 v9, {hex(f2u(1e-5))}, v9
              v_rsq_f32 v9, v9
              s_nop 0
              v_mul_f32_e64 v8, -v8, v9""")
        for k in range(40):
            a(f"""v_lshlrev_b32 v12, 16, v{XR+k}
                  v_and_b32 v13, 0xffff0000, v{XR+k}
                  v_fma_f32 v12, v12, v9, v8
                  v_fma_f32 v13, v13, v9, v8
                  v_cvt_pk_bf16_f32 v{XN+2*k}, v12, 1.0
                  v_cvt_pk_bf16_f32 v{XN+2*k+1}, v13, 1.0""")
        self.stamp("xn ready")
        a(f"s_cmp_ge_u32 s{sW}, 5\ns_cbranch_scc1 L_skip_gather")
        a(f"s_lshl_b32 s84, s{sW}, 10\ns_add_u32 s85, s84, {MODG}\ns_add_u32 s86, s84, {MODG + 5120}")
        a.label("L_gather")
        a.vm(f"buffer_load_dwordx4 v[8:11], v{vL16}, s[{R_WS}:{R_WS+3}], s85 offen sc1", track=False)
        a.vm(f"buffer_load_dwordx4 v[12:15], v{vL16}, s[{R_WS}:{R_WS+3}], s86 offen sc1", track=False)
        a("s_waitcnt vmcnt(0)")
        a(f"""v_cmp_ne_u32 vcc, s{sTAG}, v9
              v_cmp_ne_u32 s[88:89], s{sTAG}, v11
              v_cmp_ne_u32 s[90:91], s{sTAG}, v13
              v_cmp_ne_u32 s[92:93], s{sTAG}, v15
              s_or_b64 vcc, vcc, s[88:89]
              s_or_b64 s[90:91], s[90:91], s[92:93]
              s_or_b64 vcc, vcc, s[90:91]""")
        self.spin_tail("L_gather")
        a(f"""v_add_f32 v12, 1.0, v12
              v_add_f32 v14, 1.0, v14
              v_cvt_pk_bf16_f32 v8, v12, v8
              v_cvt_pk_bf16_f32 v9, v14, v10
              s_lshl_b32 s84, s{sW}, 9
              s_add_u32 s84, s84, {AB}
              v_lshl_add_u32 v10, v{vL}, 3, s84""")
        a.ds("ds_write_b64 v10, v[8:9]")
        a.label("L_skip_gather")
        a.wait0()
        a("s_barrier")
        self.stamp("mod gathered")
        a(f"""s_and_b32 s86, s{sW}, 1
              s_mul_i32 s84, s86, 1280
              s_add_u32 s84, s84, {AB}
              v_lshrrev_b32 v9, 4, v{vL}
              v_lshl_add_u32 v8, v9, 5, s84
              s_mul_i32 s84, s86, 51200
              v_add_u32 v10, s84, v{vTR}""")
        H = XR
        def ab_read(k):
            t = ABT + 8*(k & 1)
            a.ds(f"ds_read_b128 v[{t}:{t+3}], v8 offset:{128*k}", f"ab{k}")
            a.ds(f"ds_read_b128 v[{t+4}:{t+7}], v8 offset:{128*k+16}", f"ab{k}")
        def apply_ops(k):
            t = ABT + 8*(k & 1); L = []
            for e in range(8): L.append(f"v_dot2_f32_bf16 v{DT+e}, v{t+e}, v{XN+8*k+e}, 0")
            for e in range(4): L.append(f"v_cvt_pk_bf16_f32 v{H+4*k+e}, v{DT+2*e}, v{DT+2*e+1}")
            return L
        def qproj(with_apply):
            D = 5; NF = 50
            def issue(f):
                k, T = divmod(f, 5); r = WF + 4*(f % 10)
                a.ds(f"ds_read_b64_tr_b16 v[{r}:{r+1}], v10 offset:{k*5120 + T*32}", f"w{f}")
                a.ds(f"ds_read_b64_tr_b16 v[{r+2}:{r+3}], v10 offset:{k*5120 + 2560 + T*32}", f"w{f}")
            if with_apply:
                ab_read(0); ab_read(1)
            for f in range(D): issue(f)
            if with_apply:
                a.wait(ds="ab0")
                for op in apply_ops(0): a(op)
            for f in range(NF):
                k, T = divmod(f, 5); r = WF + 4*(f % 10)
                pend = []
                if with_apply and k + 1 < 10:
                    ops = apply_ops(k + 1)
                    if T == 0:
                        a.wait(ds=f"ab{k+1}")
                    pend = ops[[0,3,6,8,10][T]:[3,6,8,10,12][T]]
                a.wait(ds=f"w{f}")
                a(f"v_mfma_f32_16x16x32_bf16 v[{ACC+4*T}:{ACC+4*T+3}], v[{r}:{r+3}], v[{H+4*k}:{H+4*k+3}], " + ("0" if k == 0 else f"v[{ACC+4*T}:{ACC+4*T+3}]"))
                if f + D < NF: issue(f + D)
                if with_apply and T == 3 and k + 2 < 10: ab_read(k + 2)
                for op in pend: a(op)
        a(f"s_lshr_b32 s84, s{sW}, 1\ns_and_b32 s85, s{sJ}, 3\ns_cmp_eq_u32 s84, s85\ns_cbranch_scc1 L_kvwave")
        qproj(True)
        a("s_branch L_qdone")
        a.label("L_kvwave")
        a.dsq = []
        a("s_setprio 2")
        a(f"""v_lshrrev_b32 v11, 4, v{vL}
              v_bfe_u32 v12, v{vL}, 2, 2
              v_lshl_add_u32 v11, v11, 3, v12
              v_mul_u32_u24 v11, 40, v11
              v_and_b32 v12, 3, v{vL}
              v_lshl_add_u32 v11, v12, 3, v11
              s_mul_i32 s84, s86, {320*40}
              s_add_u32 s84, s84, {WKV}
              v_add_u32 v11, s84, v11""")
        def kv_issue(k):
            r = WF + 8*(k & 1)
            for T in range(2):
                a.ds(f"ds_read_b64_tr_b16 v[{r+4*T}:{r+4*T+1}], v11 offset:{k*1280 + T*32}", f"kv{k}")
                a.ds(f"ds_read_b64_tr_b16 v[{r+4*T+2}:{r+4*T+3}], v11 offset:{k*1280 + 160 + T*32}", f"kv{k}")
        for isv in (0, 1):
            if isv == 0: a(f"s_cmp_ge_u32 s{sJ}, 4\ns_cbranch_scc1 L_vwave")
            else: a.label("L_vwave"); a.dsq = []
            ab_read(0); kv_issue(0); ab_read(1); kv_issue(1)
            for k in range(10):
                a.wait(ds=f"ab{k}")
                ops = apply_ops(k)
                for op in ops[:8]: a(op)
                if k + 2 < 10: ab_read(k + 2)
                for op in ops[8:]: a(op)
                a.wait(ds=f"kv{k}")
                r = WF + 8*(k & 1)
                for T in range(2):
                    w_ = f"v[{r+4*T}:{r+4*T+3}]"; h_ = f"v[{H+4*k}:{H+4*k+3}]"
                    A_, B_ = (w_, h_) if isv == 0 else (h_, w_)
                    a(f"v_mfma_f32_16x16x32_bf16 v[{AKV+4*T}:{AKV+4*T+3}], {A_}, {B_}, " + ("0" if k == 0 else f"v[{AKV+4*T}:{AKV+4*T+3}]"))
                if k + 2 < 10: kv_issue(k + 2)
            if isv == 0: a("s_branch L_kvred")
        a.label("L_kvred")
        a.dsq = []
        a(f"v_add_u32 v12, {KVX}, v{vL16}\nv_mov_b32 v13, {CNT+4}")
        a("s_cmp_eq_u32 s86, 0\ns_cbranch_scc1 L_kv_b0")
        a.ds(f"ds_write_b128 v12, v[{AKV}:{AKV+3}]")
        a.ds(f"ds_write_b128 v12, v[{AKV+4}:{AKV+7}] offset:1024")
        a("v_mov_b32 v14, 1")
        a.wait_ds0()
        a.ds("ds_write_b32 v13, v14")
        a("s_branch L_kv_done")
        a.label("L_kv_b0")
        a.dsq = []
        a(f"""s_lshr_b32 s87, s85, 1
              s_lshl_b32 s88, s{sG}, 1
              s_add_u32 s87, s87, s88
              s_mul_i32 s87, s87, {KVT}
              s_add_u32 s87, s87, {KVD}
              s_and_b32 s88, s85, 1
              v_and_b32 v14, 15, v{vL}
              v_lshrrev_b32 v15, 4, v{vL}
              v_mov_b32 v{DT+2}, 0x7fffffff
              s_cmp_ge_u32 s{sJ}, 4
              s_cbranch_scc1 L_kv_voff""")
        a(f"""s_lshl_b32 s89, s88, 4
              v_add_u32 v14, s89, v14
              v_lshrrev_b32 v{DT}, 1, v15
              v_lshl_add_u32 v{DT}, v{DT}, 5, v14
              v_lshlrev_b32 v{DT}, 4, v{DT}
              v_and_b32 v{DT+1}, 1, v15
              v_lshl_add_u32 v{DT}, v{DT+1}, 3, v{DT}
              v_lshlrev_b32 v{DT+1}, 3, v14
              v_add_u32 v{DT+1}, 1024, v{DT+1}
              v_cmp_eq_u32 vcc, 0, v15
              v_cndmask_b32 v{DT+1}, v{DT+2}, v{DT+1}, vcc
              s_mov_b64 s[90:91], 0
              s_branch L_kv_spin""")
        a.label("L_kv_voff")
        a(f"""s_mul_i32 s89, s88, 672
              s_add_u32 s89, s89, 1280
              v_and_b32 v{DT}, 1, v15
              v_mul_u32_u24 v{DT}, 336, v{DT}
              v_lshl_add_u32 v{DT}, v14, 4, v{DT}
              v_lshrrev_b32 v{DT+1}, 1, v15
              v_lshl_add_u32 v{DT}, v{DT+1}, 3, v{DT}
              v_add_u32 v{DT}, s89, v{DT}
              v_add_u32 v{DT+1}, 256, v{DT}
              v_cmp_ge_u32 vcc, 4, v14
              v_cndmask_b32 v{DT+1}, v{DT+2}, v{DT+1}, vcc
              v_cmp_eq_u32 s[90:91], 4, v14""")
        a.label("L_kv_spin")
        a.ds("ds_read_b32 v14, v13"); a.wait_ds0()
        a("v_cmp_eq_u32 vcc, 0, v14")
        self.spin_tail("L_kv_spin")
        a.ds(f"ds_read_b128 v[{ABT}:{ABT+3}], v12")
        a.ds(f"ds_read_b128 v[{ABT+4}:{ABT+7}], v12 offset:1024")
        a("v_mov_b32 v15, 0x3f803f80")
        a.wait_ds0()
        for e in range(8): a(f"v_add_f32 v{AKV+e}, v{AKV+e}, v{ABT+e}")
        for e in range(4): a(f"v_cvt_pk_bf16_f32 v{ABT+e}, v{AKV+2*e}, v{AKV+2*e+1}")
        a(f"v_cndmask_b32 v{ABT+2}, v{ABT+2}, v15, s[90:91]\nv_cndmask_b32 v{ABT+3}, v{ABT+3}, v15, s[90:91]")
        a.vm(f"buffer_store_dwordx2 v[{ABT}:{ABT+1}], v{DT}, s[{R_WS}:{R_WS+3}], s87 offen sc1")
        a.vm(f"buffer_store_dwordx2 v[{ABT+2}:{ABT+3}], v{DT+1}, s[{R_WS}:{R_WS+3}], s87 offen sc1")
        a(f"""s_lshl_b32 s87, s{sG}, 3
              s_add_u32 s87, s87, s{sJ}
              s_lshl_b32 s87, s87, 7
              s_add_u32 s87, s87, {KVF}
              v_mov_b32 v14, s{sTAG}
              v_mov_b32 v15, 0""")
        a.wait_vm0()
        a("s_mov_b64 exec, 1")
        a.vm(f"buffer_store_dword v14, v15, s[{R_WS}:{R_WS+3}], s87 offen sc1")
        a("s_mov_b64 exec, -1")
        a.label("L_kv_done")
        a("s_setprio 0")
        self.stamp("kv published")
        qproj(False)
        a.label("L_qdone")
        a.dsq = []; a.vmq = []
        self.stamp("qproj done")
        a(f"s_lshl_b32 s84, s{sW}, 12\ns_add_u32 s84, s84, {KVF}\nv_and_b32 v13, 31, v{vL}\nv_lshlrev_b32 v13, 7, v13")
        a.label("L_kvpoll")
        a.vm(f"buffer_load_dword v12, v13, s[{R_WS}:{R_WS+3}], s84 offen sc1", track=False)
        a("s_waitcnt vmcnt(0)")
        a(f"v_cmp_ne_u32 vcc, s{sTAG}, v12")
        self.spin_tail("L_kvpoll")
        self.stamp("kv flags seen")
        a("s_barrier")
        self.kv_dma(0); self.kv_dma(1)
        a(f"s_or_b32 s84, s2, s{sW}\ns_cmp_lg_u32 s84, 0\ns_cbranch_scc1 L_skip_epoch")
        a(f"v_mov_b32 v14, s{sTAG}\nv_mov_b32 v15, 0\ns_mov_b64 exec, 1")
        a.vm(f"buffer_store_dword v14, v15, s[{R_WS}:{R_WS+3}], 0 offen sc1", optional=True)
        a("s_mov_b64 exec, -1")
        a.label("L_skip_epoch")
        a(f"""s_lshr_b32 s84, s{sW}, 1
              s_mul_i32 s84, s84, {16*336}
              s_mul_i32 s85, s86, {64*336}
              s_add_u32 s84, s84, s85
              v_and_b32 v12, 15, v{vL}
              v_mul_u32_u24 v12, 336, v12
              v_lshrrev_b32 v13, 4, v{vL}
              v_lshl_add_u32 v12, v13, 4, v12
              v_add_u32 v12, s84, v12""")
        for T in range(5): a.ds(f"ds_write_b128 v12, v[{ACC+4*T}:{ACC+4*T+3}] offset:{64*T}")
        a(f"""s_lshr_b32 s84, s{sW}, 2
              s_mul_i32 s84, s84, {32*336}
              s_and_b32 s85, s{sW}, 3
              s_mul_i32 s85, s85, 80
              s_add_u32 s84, s84, s85
              v_and_b32 v12, 31, v{vL}
              v_mul_u32_u24 v12, 336, v12
              v_add_u32 v12, s84, v12
              v_lshrrev_b32 v13, 5, v{vL}
              v_lshl_add_u32 v14, v13, 5, v12
              v_mov_b32 v15, {hex(f2u(math.log2(math.e)/math.sqrt(20)))}
              v_cmp_eq_u32 vcc, 0, v13
              v_cndmask_b32 v13, 0, v15, vcc""")
        a.wait0()
        a("s_barrier")
        for pb in range(2):
            t = 32 + 12*pb
            a.ds(f"ds_read_b128 v[{t}:{t+3}], v14 offset:{pb*64*336}")
            a.ds(f"ds_read_b128 v[{t+4}:{t+7}], v14 offset:{pb*64*336+16}")
            a.ds(f"ds_read_b128 v[{t+8}:{t+11}], v12 offset:{pb*64*336+64}")
        self.att_addr()
        a.wait_ds0()
        for e in range(12): a(f"v_add_f32 v{32+e}, v{32+e}, v{44+e}")
        for e in range(12): a(f"v_mul_f32 v{32+e}, v{15 if e < 8 else 13}, v{32+e}")
        for e in range(4): a(f"v_cvt_pk_bf16_f32 v{80+e}, v{32+2*e}, v{33+2*e}")
        for e in range(2): a(f"v_cvt_pk_bf16_f32 v{70+e}, v{40+2*e}, v{41+2*e}")
        self.stamp("q ready")

    def kv_dma(self, chunk):
        a = self.a
        slot = chunk % 3
        a(f"s_lshl_b32 s94, s{sW}, 10\ns_add_u32 s95, s94, {KVD + chunk*4*KVT}\ns_add_u32 s94, s94, {RING + slot*SLOT}\ns_mov_b32 m0, s94")
        a(f"s_cmp_ge_u32 s{sW}, 3")
        a.vm(f"buffer_load_dwordx4 v{vL16}, s[{R_WS}:{R_WS+3}], s95 offen sc1 lds", f"kv{chunk}")
        lb = a.newlabel("skip_kv")
        a(f"s_cbranch_scc1 {lb}")
        a("s_add_u32 m0, s94, 8192\ns_add_u32 s95, s95, 8192")
        a.vm(f"buffer_load_dwordx4 v{vL16}, s[{R_WS}:{R_WS+3}], s95 offen sc1 lds", f"kv{chunk}", optional=True)
        a.label(lb)

    def att_addr(self):
        a = self.a
        a(f"""v_add_u32 v8, {RING}, v{vL16}
              v_and_b32 v9, 31, v{vL}
              v_min_u32 v10, 20, v9
              v_lshlrev_b32 v9, 3, v9
              v_add_u32 v9, {RING + 1024}, v9
              v_lshlrev_b32 v10, 4, v10
              v_lshrrev_b32 v11, 5, v{vL}
              v_mul_u32_u24 v11, 336, v11
              v_add_u32 v10, v10, v11
              v_add_u32 v10, {RING + 1280}, v10""")

    def attention(self):
        a = self.a
        O, S, K1, K2, Q2, V1, V2, Q1 = 16, (32, 48), 64, 68, 70, 72, 76, 80
        WP = 96
        def toff(t): return ((t // 4) % 3) * SLOT + (t % 4) * KVT
        def rdK(t):
            a.ds(f"ds_read_b128 v[{K1}:{K1+3}], v8 offset:{toff(t)}", f"K{t}")
            a.ds(f"ds_read_b64 v[{K2}:{K2+1}], v9 offset:{toff(t)}", f"K{t}")
        def rdV(t, f):
            r = (V1, V2)[f]
            a.ds(f"ds_read_b128 v[{r}:{r+3}], v10 offset:{toff(t) + 672*f}", f"V{t}_{f}")
        def qk1(t): a(f"v_mfma_f32_32x32x16_bf16 v[{S[t&1]}:{S[t&1]+15}], v[{K1}:{K1+3}], v[{Q1}:{Q1+3}], 0")
        def qk2(t): a(f"v_mfma_f32_32x32x8bf16_1k v[{S[t&1]}:{S[t&1]+15}], v[{K2}:{K2+1}], v[{Q2}:{Q2+1}], v[{S[t&1]}:{S[t&1]+15}]")
        a(f"""v_lshrrev_b32 v11, 4, v{vL}
              v_bfe_u32 v12, v{vL}, 2, 2
              v_lshl_add_u32 v12, v11, 3, v12
              v_mul_u32_u24 v12, 3072, v12
              v_and_b32 v11, 1, v11
              v_lshlrev_b32 v13, 1, v11
              v_and_b32 v14, 3, v{vL}
              v_xor_b32 v13, v13, v14
              v_lshl_add_u32 v15, v13, 4, v12
              s_and_b32 s84, s{sW}, 1
              v_xor_b32 v11, s84, v11
              v_lshlrev_b32 v11, 5, v11
              v_lshrrev_b32 v12, 2, v{vL}
              v_lshlrev_b32 v12, 6, v12
              v_lshl_add_u32 v12, v14, 3, v12
              s_mul_i32 s85, s{sW}, 10240
              v_add3_u32 v12, v12, v11, s85
              v_xor_b32 v13, 32, v12
              v_mov_b32 v11, v15
              s_lshr_b32 s86, s{sW}, 1
              s_mul_i32 s86, s86, 96
              s_lshl_b32 s84, s84, 5
              s_add_u32 s86, s86, s84
              s_mul_i32 s84, s{sJ}, 384
              s_add_u32 s86, s86, s84""")
        for e in range(4): a(f"v_mov_b32 v{92+e}, -1")
        def w1_dma(r):
            L = []
            for i in range(10):
                ks, half = divmod(i, 2)
                L.append(lambda i=i, ks=ks, half=half: (
                    a(f"s_add_u32 m0, s85, {i*1024}\ns_add_u32 s87, s86, {((5*r + ks)*32 + 4*half)*3072}"),
                    a.vm(f"buffer_load_dwordx4 v11, s[{R_W1}:{R_W1+3}], s87 offen lds", f"w1_{r}")))
            return L
        def w1_read(r):
            L = []
            for ks in range(5):
                for tile, ad in ((0, 12), (1, 13)):
                    d = WP + 80*tile + 4*(5*r + ks)
                    for half in range(2):
                        L.append(lambda d=d, ad=ad, ks=ks, half=half: a.ds(f"ds_read_b64_tr_b16 v[{d+2*half}:{d+2*half+1}], v{ad} offset:{ks*2048 + half*1024}", "w1r"))
            return L
        def prefill():
            L = []
            for i in range(6):
                L.append(lambda i=i: (
                    a(f"s_add_u32 s87, s{sW}, {8*i}\ns_min_u32 s87, s87, 44\ns_lshl_b32 s87, s87, 10\ns_add_u32 s87, s87, s88"),
                    a.vm(f"buffer_store_dwordx4 v[92:95], v{vL16}, s[{R_WS}:{R_WS+3}], s87 offen sc1", "pf")))
            return L
        a(f"s_mul_i32 s88, s{sJ}, 46080\ns_add_u32 s88, s88, s{sGB}")
        def pf_flag():
            lb = a.newlabel("skip_pff")
            a(f"""s_cmp_lg_u32 s{sW}, 0
                  s_cbranch_scc1 {lb}
                  s_lshl_b32 s87, s{sG}, 7
                  s_lshl_b32 s89, s{sJ}, 3
                  s_add_u32 s87, s87, s89
                  s_add_u32 s87, s87, {PFF}
                  v_mov_b32 v88, s{sTAG}
                  v_mov_b32 v89, s{sXCC}
                  v_mov_b32 v90, 0
                  s_mov_b64 exec, 1""")
            a.vm(f"buffer_store_dwordx2 v[88:89], v90, s[{R_WS}:{R_WS+3}], s87 offen sc1", optional=True)
            a("s_mov_b64 exec, -1")
            a.label(lb)
        def pf_load(track=True):
            a(f"s_lshl_b32 s87, s{sG}, 7\ns_add_u32 s87, s87, {PFF}\nv_and_b32 v90, 7, v{vL}\nv_lshlrev_b32 v90, 3, v90")
            a.vm(f"buffer_load_dwordx2 v[88:89], v90, s[{R_WS}:{R_WS+3}], s87 offen sc1", "pfl", track=track)
        def pf_check():
            a.wait(vm="pfl")
            lp = a.newlabel("pfspin"); ok = a.newlabel("pfok")
            a(f"v_cmp_ne_u32 vcc, s{sTAG}, v88\ns_cbranch_vccz {ok}")
            a.label(lp)
            pf_load(False)
            a(f"s_waitcnt vmcnt(0)\nv_cmp_ne_u32 vcc, s{sTAG}, v88")
            self.spin_tail(lp)
            a.label(ok)
            a(f"v_cmp_ne_u32 vcc, s{sXCC}, v89\ns_nop 0\ns_cmp_eq_u64 vcc, 0 ; same\ns_cselect_b32 s{sSAME}, 1, 0")
            if 'slow' in EXP: a(f"s_mov_b32 s{sSAME}, 0")
        def wo_dma(i):
            def f():
                lb = a.newlabel("skip_wo")
                a(f"s_add_u32 s87, s{sW}, {8*i}")
                if i == 2: a(f"s_cmp_ge_u32 s87, 20\ns_cbranch_scc1 {lb}")
                a(f"s_mul_i32 s89, s87, 5120\ns_mul_i32 s87, s87, 40960\ns_add_u32 s87, s87, s{sJ160}")
                self.n80_block(R_WO, 89, 87, "wo", optional=(i == 2))
                a.label(lb)
            return f
        def tab_load():
            lb = a.newlabel("skip_tab")
            a(f"""s_cmp_ge_u32 s{sW}, 6
                  s_cbranch_scc1 {lb}
                  s_lshl_b32 s87, s{sW}, 10
                  s_add_u32 s64, s87, {MODG + 2560*8}
                  s_add_u32 s65, s87, {MODG + 1920*8}
                  s_mul_i32 s87, s{sJ}, 640
                  s_add_u32 s89, s87, {MODG + 1280*8}
                  s_add_u32 s87, s87, {MODG + 3200*8}
                  s_cmp_eq_u32 s{sW}, 5
                  s_cselect_b32 s64, s89, s64
                  s_cselect_b32 s65, s87, s65""")
            a.vm(f"buffer_load_dwordx4 v[88:91], v{vL16}, s[{R_WS}:{R_WS+3}], s64 offen sc1", "tab", optional=True)
            a.vm(f"buffer_load_dwordx4 v[92:95], v{vL16}, s[{R_WS}:{R_WS+3}], s65 offen sc1", "tab", optional=True)
            a.label(lb)
        jobs = {s_: [] for s_ in range(16)}
        jobs[0] = w1_dma(0) + prefill()
        jobs[2] = w1_read(0) + w1_dma(1) + [pf_flag]
        jobs[4] = w1_read(1) + w1_dma(2)
        jobs[5] = [pf_load]
        jobs[6] = w1_read(2) + w1_dma(3)
        jobs[7] = [pf_check]
        jobs[8] = w1_read(3)
        jobs[9] = [wo_dma(0)]; jobs[10] = [wo_dma(1)]; jobs[11] = [wo_dma(2)]
        jobs[13] = [tab_load]
        queue = []
        def side(n):
            for _ in range(n):
                if queue:
                    f = queue.pop(0)
                    if 'noside' not in EXP: f()
        if 'twice' in EXP: a("s_mov_b32 s70, 0\nL_twice:\ns_barrier\ns_memtime s[100:101]\ns_waitcnt lgkmcnt(0)\ns_sub_u32 s5, s100, s97")
        if 'prio' in EXP: a(f"s_cmp_lt_u32 s{sW}, 4\ns_cbranch_scc1 L_noprio\ns_setprio 1\nL_noprio:")
        PB = 84
        rdK(0); rdV(0, 0)
        a.wait(ds="K0")
        qk1(0); qk2(0)
        rdK(1)
        for e in range(16): a(f"v_mov_b32 v{O+e}, 0")
        def pv2(t):
            a.wait(ds=f"V{t}_1")
            a(f"v_mfma_f32_32x32x16_bf16 v[{O}:{O+15}], v[{V2}:{V2+3}], v[{PB}:{PB+3}], v[{O}:{O+15}]")
        for t in range(64):
            c = S[t & 1]
            if t % 4 == 2 and t // 4 < 15:
                st = t // 4
                assert not queue
                self.stamp(f"pre{st}")
                a.wait(vm=f"kv{st+1}")
                self.stamp(f"vm{st}")
                if 'nobar' not in EXP: a("s_barrier")
                self.stamp(f"B{st}")
                if st + 2 < 16 and 'nokv' not in EXP: self.kv_dma(st + 2)
                queue.extend(jobs[st])
            per = -(-len(queue) // max(1, 4*(4 - (t - 2) % 4))) if queue else 0
            if t + 1 < 64:
                a.wait(ds=f"K{t+1}")
                qk1(t + 1)
            side(per)
            for e in range(0, 5): a(f"v_exp_f32 v{c+e}, v{c+e}")
            if t + 1 < 64: qk2(t + 1)
            if t + 2 < 64: rdK(t + 2)
            side(per)
            for e in range(5, 8): a(f"v_exp_f32 v{c+e}, v{c+e}")
            for e in range(4): a(f"v_cvt_pk_bf16_f32 v{c+e}, v{c+2*e}, v{c+2*e+1}")
            if t > 0: pv2(t - 1)
            rdV(t, 1)
            side(per)
            for e in range(8, 13): a(f"v_exp_f32 v{c+e}, v{c+e}")
            a.wait(ds=f"V{t}_0")
            a(f"v_mfma_f32_32x32x16_bf16 v[{O}:{O+15}], v[{V1}:{V1+3}], v[{c}:{c+3}], v[{O}:{O+15}]")
            if t + 1 < 64: rdV(t + 1, 0)
            side(per)
            for e in range(13, 16): a(f"v_exp_f32 v{c+e}, v{c+e}")
            for e in range(4): a(f"v_cvt_pk_bf16_f32 v{PB+e}, v{c+8+2*e}, v{c+9+2*e}")
        pv2(63)
        if 'twice' in EXP: a("s_add_u32 s70, s70, 1\ns_cmp_lt_u32 s70, 2\ns_nop 7\ns_nop 7\ns_cbranch_scc1 L_twice")
        assert not queue
        self.stamp("att loop done")
        a(f"""s_and_b32 s84, s{sW}, 3
              s_mul_i32 s84, s84, 5
              s_mul_i32 s85, s{sJ}, 20
              s_add_u32 s84, s84, s85
              v_lshrrev_b32 v32, 5, v{vL}
              v_add_u32 v33, s84, v32
              v_and_b32 v34, 15, v{vL}
              v_lshlrev_b32 v34, 4, v34
              v_bfe_u32 v35, v{vL}, 4, 1
              v_mul_u32_u24 v35, 20480, v35
              v_add_u32 v34, v34, v35
              v_lshrrev_b32 v35, 1, v33
              v_lshl_add_u32 v35, v35, 8, v34
              v_and_b32 v33, 1, v33
              v_lshl_add_u32 v35, v33, 3, v35
              s_add_u32 s84, s84, 4
              s_lshr_b32 s85, s84, 1
              s_lshl_b32 s85, s85, 8
              s_and_b32 s84, s84, 1
              s_lshl_b32 s84, s84, 3
              s_add_u32 s84, s84, s85
              v_add_u32 v34, s84, v34
              v_mov_b32 v33, 0x7fffffff
              v_cmp_eq_u32 vcc, 0, v32
              v_cndmask_b32 v34, v33, v34, vcc
              s_lshr_b32 s84, s{sW}, 2
              s_mul_i32 s84, s84, 40960
              s_add_u32 s84, s84, s{sGB}""")
        a(f"v_add_f32 v36, |v{O}|, |v{O+1}|".replace("v_add_f32", "v_add_f32_e64"))
        for e in range(2, 12): a(f"v_add_f32_e64 v36, v36, |v{O+e}|")
        a(f"""v_mov_b32 v37, 0x7f800000
              v_cmp_nlt_f32 vcc, v36, v37
              v_cmp_nlt_f32 s[88:89], v{O+12}, {hex(f2u(2.0**60))}
              v_cmp_ngt_f32 s[90:91], v{O+12}, {hex(f2u(2.0**-60))}""".replace(f"v_cmp_nlt_f32 s[88:89], v{O+12}, {hex(f2u(2.0**60))}", f"s_mov_b32 s92, {hex(f2u(2.0**60))}\nv_cmp_ngt_f32 s[88:89], s92, v{O+12}").replace(f"v_cmp_ngt_f32 s[90:91], v{O+12}, {hex(f2u(2.0**-60))}", f"s_mov_b32 s93, {hex(f2u(2.0**-60))}\nv_cmp_nlt_f32 s[90:91], s93, v{O+12}"))
        a("s_or_b64 vcc, vcc, s[88:89]\ns_or_b64 vcc, vcc, s[90:91]")
        a("s_cbranch_vccnz L_fallback")
        a.label("L_att_norm")
        a(f"v_rcp_f32 v36, v{O+12}")
        for e in range(12): a(f"v_mul_f32 v{O+e}, v{O+e}, v36")
        for e in range(6): a(f"v_cvt_pk_bf16_f32 v{O+e}, v{O+2*e}, v{O+2*e+1}")
        self.pub_stores([f"buffer_store_dwordx2 v[{O}:{O+1}], v35, s[{R_WS}:{R_WS+3}], s84 offen",
                         f"buffer_store_dwordx2 v[{O+2}:{O+3}], v35, s[{R_WS}:{R_WS+3}], s84 offen offset:256",
                         f"buffer_store_dwordx2 v[{O+4}:{O+5}], v34, s[{R_WS}:{R_WS+3}], s84 offen"], "ost")
        self.stamp("o stored")

    def check_frags(self, regs_list, acc, first):
        for i, r in enumerate(regs_list):
            if first and i == 0: self.a(f"v_max_u32 v{acc}, v{r+1}, v{r+3}")
            else: self.a(f"v_max3_u32 v{acc}, v{acc}, v{r+1}, v{r+3}")

    def n80_gemm(self, nk, xreg, acc, ring, nring, addr_of, pre_step=None):
        a = self.a
        NF = 5*nk; D = nring
        def issue(f):
            k, T = divmod(f, 5); r = ring + 4*(f % nring); av, off = addr_of(k)
            a.ds(f"ds_read_b64_tr_b16 v[{r}:{r+1}], v{av} offset:{off + T*32}", f"w{f}")
            a.ds(f"ds_read_b64_tr_b16 v[{r+2}:{r+3}], v{av} offset:{off + 2560 + T*32}", f"w{f}")
        issued = 0
        for f in range(NF):
            k, T = divmod(f, 5); r = ring + 4*(f % nring)
            lim = NF
            if T == 0 and pre_step: lim = pre_step(k, "pre")
            if f == 0:
                while issued < min(D, NF): issue(issued); issued += 1
            a.wait(ds=f"w{f}")
            a(f"v_mfma_f32_16x16x32_bf16 v[{acc+4*T}:{acc+4*T+3}], v[{r}:{r+3}], v[{xreg+4*k}:{xreg+4*k+3}], " + ("0" if k == 0 else f"v[{acc+4*T}:{acc+4*T+3}]"))
            nxt = f + D
            if nxt < NF:
                if nxt % 5 == 0 and pre_step: pre_step(nxt // 5, "issue")
                issue(nxt); issued += 1

    def load_batch(self, loads, regs, accv, tag):
        a = self.a
        a.wait(vm=tag)
        self.check_frags(regs, accv, True)
        ok = a.newlabel("bok"); lp = a.newlabel("bretry")
        a(f"v_cmp_eq_u32 vcc, -1, v{accv}\ns_cbranch_vccz {ok}")
        a.label(lp)
        for ld in loads: a(ld)
        a("s_waitcnt vmcnt(0)")
        self.check_frags(regs, accv, True)
        a(f"v_cmp_eq_u32 vcc, -1, v{accv}")
        self.spin_tail(lp)
        a.label(ok)

    def probe(self, voff, soff):
        a = self.a
        lp = a.newlabel("probe")
        a.label(lp)
        a(f"buffer_load_dword v15, v{voff}, s[{R_WS}:{R_WS+3}], s{soff} offen sc1")
        a.wait_vm0()
        a("v_cmp_eq_u32 vcc, -1, v15")
        self.spin_tail(lp)

    def w2_block(self, q_s, lds_base, q0, tag, optional):
        a = self.a
        a(f"""s_and_b32 s92, s{q_s}, 1
              s_mul_i32 s92, s92, 24
              s_lshr_b32 s93, s{q_s}, 1
              s_add_u32 s92, s92, s93
              s_mul_i32 s92, s92, 40960
              s_add_u32 s92, s92, s{sJ160}
              s_mul_i32 s93, s{q_s}, 5120
              s_add_u32 s93, s93, {(lds_base - q0*5120) & 0xffffffff}""")
        self.n80_block(R_W2, 93, 92, tag, optional)

    def p3(self):
        a = self.a
        ACC, X, WR, X1 = 16, 36, 76, 84
        a(f"s_cmp_ge_u32 s{sW}, 6\ns_cbranch_scc1 L_skip_tab")
        a("s_waitcnt vmcnt(3)")
        a(f"s_cmp_eq_u32 s{sW}, 5\ns_cselect_b32 s86, 40, 64\nv_cmp_gt_u32 s[88:89], s86, v{vL}\ns_mov_b64 exec, s[88:89]".replace("\ns_mov_b64 exec", "\ns_nop 1\ns_mov_b64 exec"))
        chk = f"""v_cmp_ne_u32 vcc, s{sTAG}, v89
              v_cmp_ne_u32 s[86:87], s{sTAG}, v91
              s_or_b64 vcc, vcc, s[86:87]
              v_cmp_ne_u32 s[86:87], s{sTAG}, v93
              s_or_b64 vcc, vcc, s[86:87]
              v_cmp_ne_u32 s[86:87], s{sTAG}, v95
              s_or_b64 vcc, vcc, s[86:87]"""
        a(chk); a("s_cbranch_vccz L_tabok")
        a.label("L_tabspin")
        a(f"buffer_load_dwordx4 v[88:91], v{vL16}, s[{R_WS}:{R_WS+3}], s64 offen sc1\nbuffer_load_dwordx4 v[92:95], v{vL16}, s[{R_WS}:{R_WS+3}], s65 offen sc1\ns_waitcnt vmcnt(0)")
        a(chk); self.spin_tail("L_tabspin")
        a.label("L_tabok")
        a(f"s_cmp_eq_u32 s{sW}, 5\ns_cbranch_scc1 L_tab5")
        a(f"""v_add_f32 v88, 1.0, v88
              v_add_f32 v90, 1.0, v90
              v_cvt_pk_bf16_f32 v88, v88, v90
              v_cvt_pk_bf16_f32 v89, v92, v94
              s_lshl_b32 s86, s{sW}, 8
              s_add_u32 s86, s86, {TA2}
              v_lshl_add_u32 v90, v{vL}, 2, s86""")
        a.ds("ds_write_b32 v90, v88"); a.ds("ds_write_b32 v90, v89 offset:1280")
        a("s_branch L_tabdone")
        a.label("L_tab5")
        a(f"v_mov_b32 v89, v90\nv_mov_b32 v93, v94\nv_lshlrev_b32 v90, 3, v{vL}\nv_add_u32 v90, {TGA}, v90")
        a("ds_write_b64 v90, v[88:89]\nds_write_b64 v90, v[92:93] offset:320")
        a.label("L_tabdone")
        a("s_mov_b64 exec, -1")
        a.label("L_skip_tab")
        a(f"""s_and_b32 s84, s{sW}, 3
              s_lshr_b32 s85, s{sW}, 2
              s_mul_i32 s86, s84, 20480
              s_add_u32 s86, s86, s{sGB}
              s_mul_i32 s87, s85, 10240
              s_add_u32 s87, s87, s86
              s_mul_i32 s88, s85, 51200
              v_add_u32 v8, s88, v{vTR}
              v_and_b32 v9, 3, v{vL}
              v_mul_u32_u24 v9, 5, v9
              v_bfe_u32 v10, v{vL}, 2, 2
              v_mul_u32_u24 v10, 20, v10
              s_mul_i32 s88, s85, 80
              s_add_u32 s88, s88, 4
              v_add3_u32 v9, v9, v10, s88
              v_lshrrev_b32 v10, 1, v9
              v_lshlrev_b32 v10, 8, v10
              v_and_b32 v9, 1, v9
              v_lshl_add_u32 v9, v9, 3, v10
              v_add_u32 v9, 244, v9
              v_add_u32 v10, 4096, v{vL16}
              v_add_u32 v11, 8192, v{vL16}""")
        a.wait0()
        a("s_barrier")
        self.stamp("p3 start")
        self.probe(9, 86)
        self.stamp("o probed")
        loads = [f"buffer_load_dwordx4 v[{X+4*k}:{X+4*k+3}], v{(vL16, 10, 11)[k // 4]}, s[{R_WS}:{R_WS+3}], s87 offen offset:{(k % 4)*1024} sc1" for k in range(10)]
        batches = [(0, 3), (3, 6), (6, 10)]
        for bi, (k0, k1) in enumerate(batches):
            for k in range(k0, k1): a.vm(loads[k], f"xb{bi}")
        self.w2_block(sW, RING, 0, "w2a", False)
        def pre(k, what):
            if what == "pre":
                for bi, (k0, k1) in enumerate(batches):
                    if k == k0: self.load_batch(loads[k0:k1], [X+4*q for q in range(k0, k1)], 12, f"xb{bi}")
        self.n80_gemm(10, X, ACC, WR, 4, lambda k: (8, k*5120), pre)
        self.stamp("p3 gemm")
        a(f"""v_and_b32 v9, 15, v{vL}
              v_lshrrev_b32 v10, 4, v{vL}
              v_mul_u32_u24 v12, 1280, v9
              v_lshl_add_u32 v12, v10, 3, v12
              s_lshl_b32 s88, s{sG}, 2
              s_add_u32 s88, s88, s84
              s_mul_i32 s88, s88, {16*1280}
              s_add_u32 s88, s88, s{sJ160}
              s_mul_i32 s89, s84, 5120
              s_add_u32 s89, s89, {UREG}
              v_add_u32 v13, s89, v{vL16}
              v_lshlrev_b32 v14, 4, v10
              v_add_u32 v14, {TGA}, v14
              v_lshlrev_b32 v11, 3, v10
              s_add_u32 s89, s{sJ160}, {TA2}
              v_add_u32 v11, s89, v11
              v_lshrrev_b32 v8, 1, v10
              v_lshlrev_b32 v8, 8, v8
              v_lshl_add_u32 v8, v9, 4, v8
              v_and_b32 v10, 1, v10
              v_lshl_add_u32 v8, v10, 3, v8
              s_mul_i32 s89, s{sJ}, 2560
              s_add_u32 s86, s86, s89
              s_add_u32 s86, s86, {XA_OFF}
              v_lshlrev_b32 v9, 7, v9
              s_lshl_b32 s87, s84, 11
              s_add_u32 s87, s87, s{sGB}
              s_lshl_b32 s89, s{sJ}, 1
              s_add_u32 s89, s89, s85
              s_lshl_b32 s89, s89, 3
              s_add_u32 s87, s87, s89
              s_add_u32 s87, s87, {ST_OFF}""")
        a("s_cmp_eq_u32 s85, 1\ns_cbranch_scc1 L_p3_b1")
        save = (list(a.vmq), list(a.dsq))
        for b in range(2):
            own = (0, 1, 2) if b == 0 else (3, 4); snd = (3, 4) if b == 0 else (0, 1, 2)
            if b == 1: a.label("L_p3_b1"); a.vmq, a.dsq = list(save[0]), list(save[1])
            XR_, GA, A2, PT = 36, 44, 56, 64
            for i, T in enumerate(own): a.vm(f"buffer_load_dwordx2 v[{XR_+2*i}:{XR_+2*i+1}], v12, s[{R_X}:{R_X+3}], s88 offen offset:{32*T}", "res")
            for i, T in enumerate(own):
                a.ds(f"ds_read_b128 v[{GA+4*i}:{GA+4*i+3}], v14 offset:{64*T}", "tb")
                a.ds(f"ds_read_b64 v[{A2+2*i}:{A2+2*i+1}], v11 offset:{32*T}", "tb")
            a("s_barrier")
            for T in snd: a.ds(f"ds_write_b128 v13, v[{ACC+4*T}:{ACC+4*T+3}] offset:{1024*T}")
            a.wait_ds0()
            a("s_barrier")
            for i, T in enumerate(own): a.ds(f"ds_read_b128 v[{PT+4*i}:{PT+4*i+3}], v13 offset:{1024*T}", f"pt{i}")
            a.wait(vm="res")
            st = []
            for i, T in enumerate(own):
                a.wait(ds=f"pt{i}")
                for r in range(4):
                    x1 = X1 + 4*i + r; src = XR_ + 2*i + r // 2
                    a(f"v_add_f32 v{PT+4*i+r}, v{PT+4*i+r}, v{ACC+4*T+r}")
                    a(f"v_lshlrev_b32 v{x1}, 16, v{src}" if r % 2 == 0 else f"v_and_b32 v{x1}, 0xffff0000, v{src}")
                    a(f"v_fmac_f32 v{x1}, v{GA+4*i+r}, v{PT+4*i+r}")
                for r in range(4):
                    src = A2 + 2*i + r // 2
                    a(f"v_lshlrev_b32 v{PT+4*i+r}, 16, v{src}" if r % 2 == 0 else f"v_and_b32 v{PT+4*i+r}, 0xffff0000, v{src}")
                    a(f"v_mul_f32 v{PT+4*i+r}, v{PT+4*i+r}, v{X1+4*i+r}")
                a(f"v_cvt_pk_bf16_f32 v{PT+4*i}, v{PT+4*i}, v{PT+4*i+1}\nv_cvt_pk_bf16_f32 v{PT+4*i+1}, v{PT+4*i+2}, v{PT+4*i+3}")
                st.append(f"buffer_store_dwordx2 v[{PT+4*i}:{PT+4*i+1}], v8, s[{R_WS}:{R_WS+3}], s86 offen offset:{512*T}")
            self.pub_stores(st, "xast")
            n = 4*len(own)
            a(f"v_add_f32 v16, v{X1}, v{X1+1}\nv_mul_f32 v17, v{X1}, v{X1}\nv_fmac_f32 v17, v{X1+1}, v{X1+1}")
            for e in range(2, n): a(f"v_add_f32 v16, v16, v{X1+e}\nv_fmac_f32 v17, v{X1+e}, v{X1+e}")
            self.reduce_g4_pair(16, 17, 18)
            a("s_mov_b64 exec, 0xffff")
            self.pub_stores([f"buffer_store_dwordx2 v[16:17], v9, s[{R_WS}:{R_WS+3}], s87 offen"], "xast")
            a("s_mov_b64 exec, -1")
            if b == 0: a("s_branch L_p3_done")
        a.label("L_p3_done")
        self.stamp("xa stored")

    def p4(self):
        a = self.a
        WFu, WSh = 96, 176
        AF, BF, AS, BS = 16, 20, 24, 28
        ACF, ACS, XR_, TMP = (32, 36), (40, 44), 48, 72
        a(f"""v_and_b32 v9, 15, v{vL}
              v_lshlrev_b32 v9, 7, v9
              v_lshrrev_b32 v10, 4, v{vL}
              v_lshl_add_u32 v9, v10, 5, v9
              s_lshl_b32 s86, s84, 11
              s_add_u32 s86, s86, s{sGB}
              s_add_u32 s86, s86, {ST_OFF}
              s_mul_i32 s87, s84, 20480
              s_mul_i32 s88, s85, 10240
              s_add_u32 s87, s87, s88
              s_add_u32 s88, s87, s{sGB}
              s_add_u32 s88, s88, {XA_OFF}""")
        a.label("L_stspin")
        a(f"buffer_load_dwordx4 v[32:35], v9, s[{R_WS}:{R_WS+3}], s86 offen sc1\nbuffer_load_dwordx4 v[36:39], v9, s[{R_WS}:{R_WS+3}], s86 offen offset:16 sc1")
        a.wait_vm0()
        a("v_max_u32 v10, v32, v34\nv_max3_u32 v10, v10, v36, v38\nv_cmp_eq_u32 vcc, -1, v10")
        self.spin_tail("L_stspin")
        self.stamp("st probed")
        def xa_dma(track):
            for k in range(10):
                a(f"s_add_u32 m0, s87, {1024*k}\ns_add_u32 s89, s88, {1024*k}")
                a.vm(f"buffer_load_dwordx4 v{vL16}, s[{R_WS}:{R_WS+3}], s89 offen sc1 lds", "xa", track=track)
        xa_dma(True)
        a(f"""v_add_f32 v32, v32, v34
              v_add_f32 v33, v33, v35
              v_add_f32 v36, v36, v38
              v_add_f32 v37, v37, v39
              v_add_f32 v32, v32, v36
              v_add_f32 v33, v33, v37""")
        self.reduce_g4_pair(32, 33, 34)
        a(f"""v_mul_f32 v32, {hex(f2u(1/640))}, v32
              v_mul_f32 v33, {hex(f2u(1/640))}, v33
              v_fma_f32 v33, -v32, v32, v33
              v_max_f32 v33, 0, v33
              v_add_f32 v33, {hex(f2u(1e-5))}, v33
              v_rsq_f32 v34, v33
              v_and_b32 v9, 15, v{vL}
              v_mul_f32_e64 v35, -v32, v34
              s_lshl_b32 s89, s84, 7
              s_add_u32 s89, s89, {TRM}
              v_lshl_add_u32 v10, v9, 3, s89""")
        a.ds("ds_write_b64 v10, v[34:35]")
        a(f"""v_lshrrev_b32 v10, 3, v9
              v_mul_u32_u24 v10, 1280, v10
              v_lshrrev_b32 v11, 4, v{vL}
              v_lshl_add_u32 v10, v11, 4, v10
              v_add_u32 v10, {TA2}, v10""")
        for k in range(20):
            if k == 0:
                for q in range(4): a.ds(f"ds_read_b128 v[{XR_+4*q}:{XR_+4*q+3}], v10 offset:{64*q}", f"ab{q}")
            a.wait(ds=f"ab{k}")
            r = XR_ + 4*(k % 4)
            a(f"v_mfma_f32_16x16x32_bf16 v[{AF}:{AF+3}], v[{WFu+4*k}:{WFu+4*k+3}], v[{r}:{r+3}], " + ("0" if k == 0 else f"v[{AF}:{AF+3}]"))
            a(f"v_mfma_f32_16x16x32_bf16 v[{AS}:{AS+3}], v[{WSh+4*k}:{WSh+4*k+3}], v[{r}:{r+3}], " + ("0" if k == 0 else f"v[{AS}:{AS+3}]"))
            if k + 4 < 20: a.ds(f"ds_read_b128 v[{r}:{r+3}], v10 offset:{64*(k+4)}", f"ab{k+4}")
        a(f"""s_and_b32 s90, s{sW}, 1
              s_mul_i32 s91, s90, 40960
              v_add_u32 v12, s91, v{vL16}
              s_xor_b32 s91, s91, 40960
              v_add_u32 v13, s91, v{vL16}
              s_lshl_b32 s91, s90, 8
              s_add_u32 s91, s91, {TRM}
              v_lshl_add_u32 v14, v9, 3, s91
              v_xor_b32 v15, 256, v14
              s_lshr_b32 s91, s{sW}, 1
              s_mul_i32 s91, s91, 3
              s_mul_i32 s92, s{sJ}, 12
              s_add_u32 s91, s91, s92
              s_add_u32 s91, s91, 1
              s_lshl_b32 s91, s91, 9
              s_add_u32 s91, s91, s{sGB}
              s_add_u32 s91, s91, {H1_OFF}
              s_mul_i32 s92, s90, {2*49152}
              s_add_u32 s94, s91, s92
              s_lshl_b32 s93, s90, 10
              s_sub_u32 s93, s93, 512
              s_add_u32 s95, s94, s93
              s_xor_b32 s92, s92, {2*49152}
              s_add_u32 s91, s91, s92
              s_add_u32 s91, s91, s93""")
        assert TRM % 512 == 0
        for (A_, B_) in ((AF, BF), (AS, BS)):
            for r in range(4): a(f"v_mov_b32 v{B_+r}, v{A_+r}")
            for r in range(4): a(f"v_mov_b32_dpp v{B_+r}, v{A_+r} row_ror:8 row_mask:0xf bank_mask:0x3")
            for r in range(4): a(f"v_mov_b32_dpp v{A_+r}, v{A_+r} row_ror:8 row_mask:0xf bank_mask:0xc")
        a(f"v_add_u32 v10, s87, v{vL16}")
        a.wait(vm="xa")
        self.stamp("xa landed")
        def verify():
            for h in range(2):
                for q in range(5): a.ds(f"ds_read_b128 v[{XR_+4*q}:{XR_+4*q+3}], v10 offset:{1024*(5*h+q)}")
                a.wait_ds0()
                self.check_frags([XR_+4*q for q in range(5)], 11, h == 0)
            a("v_cmp_eq_u32 vcc, -1, v11")
        verify()
        a("s_cbranch_vccz L_xaok")
        a.label("L_xaretry")
        xa_dma(False); a("s_waitcnt vmcnt(0)"); verify()
        self.spin_tail("L_xaretry")
        a.label("L_xaok")
        a("s_barrier")
        self.stamp("p4 start")
        a(f"s_cmp_ge_u32 s{sW}, 6\ns_cbranch_scc1 L_skip_w2b\ns_add_u32 s86, s{sW}, 8\ns_mov_b32 s87, {RING}\ns_cmp_lt_u32 s{sW}, 2\ns_cselect_b32 s87, s87, {UREG - 10*5120}")
        a(f"""s_and_b32 s92, s86, 1
              s_mul_i32 s92, s92, 24
              s_lshr_b32 s93, s86, 1
              s_add_u32 s92, s92, s93
              s_mul_i32 s92, s92, 40960
              s_add_u32 s92, s92, s{sJ160}
              s_mul_i32 s93, s86, 5120
              s_add_u32 s93, s93, s87""")
        self.n80_block(R_W2, 93, 92, "w2b", True)
        a.label("L_skip_w2b")
        NR = 6
        def xread(n):
            i, k = divmod(n, 20); r = XR_ + 4*(n % NR)
            a.ds(f"ds_read_b128 v[{r}:{r+3}], v{12 if i < 2 else 13} offset:{(i & 1)*20480 + k*1024}", f"x{n}")
        def epi(i):
            L = []; RM = 8 + 2*(i & 1)
            tiles = [(ACF[i & 1], AF, BF, 95 if i < 2 else 91)] + ([(ACS[i & 1], AS, BS, 94)] if i < 2 else [])
            for ti, (C, A_, B_, so) in enumerate(tiles):
                t = TMP + 4*ti
                for r in range(4): L.append(f"v_fma_f32 v{t+r}, v{RM+1}, v{A_+r}, v{B_+r}")
                for r in range(4): L.append(f"v_fma_f32 v{C+r}, v{RM}, v{C+r}, v{t+r}")
                for r in range(4): L.append(f"v_mul_f32 v{t+r}, {hex(f2u(-math.log2(math.e)))}, v{C+r}")
                for r in range(4): L.append(f"v_exp_f32 v{t+r}, v{t+r}")
                for r in range(4): L.append(f"v_add_f32 v{t+r}, 1.0, v{t+r}")
                for r in range(4): L.append(f"v_rcp_f32 v{t+r}, v{t+r}")
                for r in range(4): L.append(f"v_mul_f32 v{C+r}, v{C+r}, v{t+r}")
                L.append(f"v_cvt_pk_bf16_f32 v{t}, v{C}, v{C+1}"); L.append(f"v_cvt_pk_bf16_f32 v{t+1}, v{C+2}, v{C+3}")
                L.append(("st", f"s_add_u32 s86, s{so}, {(i & 1)*49152}", f"buffer_store_dwordx2 v[{t}:{t+1}], v80, s[{R_WS}:{R_WS+3}], s86 offen"))
            return L
        def emit(op):
            if isinstance(op, tuple): a(op[1]); self.pub_stores([op[2]], "h1st")
            else: a(op)
        a("v_mov_b32 v80, v8")
        for i in range(2): a.ds(f"ds_read_b64 v[{8+2*i}:{9+2*i}], v14 offset:{128*i}", f"rm{i}")
        for n in range(NR): xread(n)
        pend = []
        for n in range(80):
            i, k = divmod(n, 20); r = XR_ + 4*(n % NR)
            if k == 2 and i > 0:
                a.wait(ds=f"rm{i-1}"); pend = epi(i - 1)
            a.wait(ds=f"x{n}")
            C = ACF[i & 1]
            a(f"v_mfma_f32_16x16x32_bf16 v[{C}:{C+3}], v[{WFu+4*k}:{WFu+4*k+3}], v[{r}:{r+3}], " + ("0" if k == 0 else f"v[{C}:{C+3}]"))
            if i < 2:
                q = -(-len(pend) // max(1, 2*(19 - k))) if pend else 0
                for _ in range(min(q, 2)):
                    if pend: emit(pend.pop(0))
                C = ACS[i & 1]
                a(f"v_mfma_f32_16x16x32_bf16 v[{C}:{C+3}], v[{WSh+4*k}:{WSh+4*k+3}], v[{r}:{r+3}], " + ("0" if k == 0 else f"v[{C}:{C+3}]"))
            if n + NR < 80: xread(n + NR)
            q = -(-len(pend) // max(1, 19 - k)) if pend else 0
            for _ in range(q):
                if pend: emit(pend.pop(0))
            if k == 19:
                assert not pend
                if i in (1, 2): a.ds(f"ds_read_b64 v[{8+2*((i+1)&1)}:{9+2*((i+1)&1)}], v15 offset:{128*((i+1)&1)}", f"rm{i+1}")
        a.wait(ds="rm3")
        for op in epi(3): emit(op)
        self.stamp("h1 stored")

    def p5(self):
        a = self.a
        ACC, WR, X, X1 = 16, 36, 96, 84
        a("s_barrier")
        for i in range(2):
            a(f"s_add_u32 s86, s{sW}, {14 + 8*i}")
            self.w2_block(86, 0, 14, "w2c", False)
        a(f"""v_bfe_u32 v9, v{vL}, 3, 2
              v_mul_u32_u24 v9, 12, v9
              v_bfe_u32 v10, v{vL}, 1, 2
              v_mul_u32_u24 v10, 3, v10
              v_and_b32 v11, 1, v{vL}
              v_lshlrev_b32 v11, 1, v11
              v_add3_u32 v9, v9, v10, v11
              v_lshlrev_b32 v9, 9, v9
              v_add_u32 v9, 508, v9
              s_mul_i32 s86, s84, 49152
              s_mul_i32 s87, s85, 24576
              s_add_u32 s86, s86, s87
              s_add_u32 s86, s86, s{sGB}
              s_add_u32 s86, s86, {H1_OFF}
              s_mul_i32 s87, s85, 5120
              v_add_u32 v10, s87, v{vTR}
              v_add_u32 v11, {UREG}, v10
              v_add_u32 v12, 40960, v10""")
        self.stamp("p5 start")
        self.probe(9, 86)
        self.stamp("h1 probed")
        loads = []
        for k in range(24):
            loads.append(f"s_add_u32 s87, s86, {(k // 4)*4096}\nbuffer_load_dwordx4 v[{X+4*k}:{X+4*k+3}], v{vL16}, s[{R_WS}:{R_WS+3}], s87 offen offset:{(k % 4)*1024} sc1")
        batches = [(0, 3), (3, 8), (8, 16), (16, 24)]
        for bi, (k0, k1) in enumerate(batches):
            for k in range(k0, k1): a.vm(loads[k], f"hb{bi}")
        a("s_barrier")
        def addr_of(k):
            t = k if k < 15 else k - 15
            if t < 5: return (11, RING - UREG + t*10240)
            if t < 7: return (11, (t - 5)*10240)
            if t < 11: return (10, (t - 7)*10240)
            return (12, (t - 11)*10240)
        def refill(q0, n, tag):
            for i in range(-(-n // 8)):
                lb = a.newlabel("skip_rf"); part = (8*i + 8 > n)
                a(f"s_add_u32 s88, s{sW}, {q0 + 8*i}")
                if part: a(f"s_cmp_ge_u32 s88, {q0 + n}\ns_cbranch_scc1 {lb}")
                a(f"""s_mov_b32 s89, {(-44*5120) & 0xffffffff}
                      s_cmp_lt_u32 s88, 44
                      s_cselect_b32 s89, {(UREG - 40*5120) & 0xffffffff}, s89
                      s_cmp_lt_u32 s88, 40
                      s_cselect_b32 s89, {(RING - 30*5120) & 0xffffffff}, s89
                      s_and_b32 s92, s88, 1
                      s_mul_i32 s92, s92, 24
                      s_lshr_b32 s93, s88, 1
                      s_add_u32 s92, s92, s93
                      s_mul_i32 s92, s92, 40960
                      s_add_u32 s92, s92, s{sJ160}
                      s_mul_i32 s93, s88, 5120
                      s_add_u32 s93, s93, s89""")
                self.n80_block(R_W2, 93, 92, tag, part)
                a.label(lb)
        def pre(k, what):
            if what == "pre":
                for bi, (k0, k1) in enumerate(batches):
                    if k == k0: self.load_batch(loads[k0:k1], [X+4*q for q in range(k0, k1)], 13, f"hb{bi}")
                if k == 5: a("s_barrier"); refill(30, 8, "rf0")
                if k == 10: a("s_barrier"); refill(38, 10, "rf1")
            else:
                if k == 15: a.wait(vm="rf0"); a("s_barrier")
                if k == 19: a.wait_vm0(); a("s_barrier")
        self.n80_gemm(24, X, ACC, WR, 6, addr_of, pre)
        self.stamp("p5 gemm")
        a(f"""v_and_b32 v9, 15, v{vL}
              v_lshrrev_b32 v10, 4, v{vL}
              v_mul_u32_u24 v12, 1280, v9
              v_lshl_add_u32 v12, v10, 3, v12
              s_lshl_b32 s88, s{sG}, 2
              s_add_u32 s88, s88, s84
              s_mul_i32 s88, s88, {16*1280}
              s_add_u32 s88, s88, s{sJ160}
              s_mul_i32 s89, s84, 5120
              s_add_u32 s89, s89, 40960
              v_add_u32 v13, s89, v{vL16}
              v_lshlrev_b32 v14, 4, v10
              v_add_u32 v14, {TGB}, v14""")
        a("s_cmp_eq_u32 s85, 1\ns_cbranch_scc1 L_p5_b1")
        for b in range(2):
            own = (0, 1, 2) if b == 0 else (3, 4); snd = (3, 4) if b == 0 else (0, 1, 2)
            if b == 1: a.label("L_p5_b1"); a.vmq, a.dsq = [], []
            GB_, PT = 44, 64
            for T in snd: a.ds(f"ds_write_b128 v13, v[{ACC+4*T}:{ACC+4*T+3}] offset:{1024*T}")
            for i, T in enumerate(own): a.ds(f"ds_read_b128 v[{GB_+4*i}:{GB_+4*i+3}], v14 offset:{64*T}")
            a.wait_ds0()
            a("s_barrier")
            for i, T in enumerate(own): a.ds(f"ds_read_b128 v[{PT+4*i}:{PT+4*i+3}], v13 offset:{1024*T}", f"pt{i}")
            for i, T in enumerate(own):
                a.wait(ds=f"pt{i}")
                for r in range(4): a(f"v_add_f32 v{PT+4*i+r}, v{PT+4*i+r}, v{ACC+4*T+r}")
                for r in range(4): a(f"v_fmac_f32 v{X1+4*i+r}, v{GB_+4*i+r}, v{PT+4*i+r}")
                a(f"v_cvt_pk_bf16_f32 v{PT+4*i}, v{X1+4*i}, v{X1+4*i+1}\nv_cvt_pk_bf16_f32 v{PT+4*i+1}, v{X1+4*i+2}, v{X1+4*i+3}")
                a.vm(f"buffer_store_dwordx2 v[{PT+4*i}:{PT+4*i+1}], v12, s[{R_OUT}:{R_OUT+3}], s88 offen offset:{32*T}")
            if b == 0: a("s_branch L_p5_done")
        a.label("L_p5_done")
        self.stamp("out stored")

    def fallback(self):
        a = self.a
        O, S, K1, K2, Q2, V1, V2, Q1, CI = 16, 48, 64, 68, 70, 72, 76, 80, 40
        a.label("L_fallback")
        a.wait0()
        a(f"v_mov_b32 v38, 0xff800000\ns_mov_b32 s86, {KVD}\nv_subrev_u32 v8, {RING}, v8\nv_subrev_u32 v9, {RING}, v9\nv_subrev_u32 v10, {RING}, v10")
        a.label("L_fb1")
        a(f"buffer_load_dwordx4 v[{K1}:{K1+3}], v8, s[{R_WS}:{R_WS+3}], s86 offen sc1")
        a(f"buffer_load_dwordx2 v[{K2}:{K2+1}], v9, s[{R_WS}:{R_WS+3}], s86 offen sc1")
        a("s_waitcnt vmcnt(0)")
        a(f"v_mfma_f32_32x32x16_bf16 v[{S}:{S+15}], v[{K1}:{K1+3}], v[{Q1}:{Q1+3}], 0")
        a(f"v_mfma_f32_32x32x8bf16_1k v[{S}:{S+15}], v[{K2}:{K2+1}], v[{Q2}:{Q2+1}], v[{S}:{S+15}]")
        for e in range(8): a(f"v_max3_f32 v38, v38, v{S+2*e}, v{S+2*e+1}")
        a(f"s_add_u32 s86, s86, {KVT}\ns_cmp_lt_u32 s86, {KVD + 64*KVT}\ns_cbranch_scc1 L_fb1")
        a("v_mov_b32 v39, v38")
        a("v_permlane32_swap_b32 v38, v39")
        a("v_max_f32 v38, v38, v39")
        a("v_mov_b32 v84, v34\nv_mov_b32 v85, v35")
        a("v_sub_f32 v47, 0, v38")
        for e in range(15): a(f"v_mov_b32 v{32+e}, v47")
        for e in range(16): a(f"v_mov_b32 v{O+e}, 0")
        a(f"s_mov_b32 s86, {KVD}")
        a.label("L_fb2")
        a(f"buffer_load_dwordx4 v[{K1}:{K1+3}], v8, s[{R_WS}:{R_WS+3}], s86 offen sc1")
        a(f"buffer_load_dwordx2 v[{K2}:{K2+1}], v9, s[{R_WS}:{R_WS+3}], s86 offen sc1")
        a(f"buffer_load_dwordx4 v[{V1}:{V1+3}], v10, s[{R_WS}:{R_WS+3}], s86 offen sc1")
        a(f"buffer_load_dwordx4 v[{V2}:{V2+3}], v10, s[{R_WS}:{R_WS+3}], s86 offen offset:672 sc1")
        a("s_waitcnt vmcnt(0)")
        a(f"v_mfma_f32_32x32x16_bf16 v[{S}:{S+15}], v[{K1}:{K1+3}], v[{Q1}:{Q1+3}], v[32:47]")
        a(f"v_mfma_f32_32x32x8bf16_1k v[{S}:{S+15}], v[{K2}:{K2+1}], v[{Q2}:{Q2+1}], v[{S}:{S+15}]")
        for e in range(16): a(f"v_exp_f32 v{S+e}, v{S+e}")
        for e in range(8): a(f"v_cvt_pk_bf16_f32 v{S+(e//4)*8+e%4}, v{S+2*e}, v{S+2*e+1}")
        a(f"v_mfma_f32_32x32x16_bf16 v[{O}:{O+15}], v[{V1}:{V1+3}], v[{S}:{S+3}], v[{O}:{O+15}]")
        a(f"v_mfma_f32_32x32x16_bf16 v[{O}:{O+15}], v[{V2}:{V2+3}], v[{S+8}:{S+11}], v[{O}:{O+15}]")
        a(f"s_add_u32 s86, s86, {KVT}\ns_cmp_lt_u32 s86, {KVD + 64*KVT}\ns_nop 7\ns_cbranch_scc1 L_fb2")
        a("v_mov_b32 v34, v84\nv_mov_b32 v35, v85\ns_nop 7")
        a("s_branch L_att_norm")

    def pub_stores(self, stores, tag):
        a = self.a
        l1 = a.newlabel("far"); l2 = a.newlabel("pub")
        a(f"s_cmp_eq_u32 s{sSAME}, 1 ; same\ns_cbranch_scc0 {l1}")
        for st in stores: a.vm(st, tag)
        a(f"s_branch {l2}")
        a.label(l1)
        for st in stores: a.vm(st + " sc1", track=False)
        a.label(l2)

    def finish(self):
        a = self.a
        self.dump_stamps()
        a.label("L_end")
        a("s_endpgm")
        if self.stop != "q":
            self.fallback(); self.force_sets.append(("L_fallback",))

    def build(self):
        self.prologue()
        if self.stop == "q":
            self.dump([80, 81, 82, 83, 70, 71], 0)
        else:
            self.attention()
            if self.stop == "o":
                self.a.wait0(); self.dump(list(range(96, 104)) + list(range(172, 180)) + list(range(252, 256)), 0)
            else:
                self.p3()
                if self.stop != "xa":
                    self.p4()
                    if self.stop != "h1": self.p5()
        self.finish()
        lines, added, errs = fix_hazards(self.a.lines)
        for e in errs: print("ERR", e, file=sys.stderr)
        errs, info = check_all(lines, self.force_sets)
        for e in errs[:40]: print("ERR", e, file=sys.stderr)
        self.a.lines = lines
        hdr = open("cdna_kernels/" + NAME + ".s.ref").read().split("; Override launch")[0]
        out = hdr + "; @launch grid=(256,1,1) block=(512,1,1) lds=163840\n"
        out += f""".amdgcn_target "amdgcn-amd-amdhsa--gfx950"
.text
.globl {NAME}_kernel
.p2align 8
.type {NAME}_kernel,@function
{NAME}_kernel:
""" + self.a.text() + f""".section .rodata,"a"
.p2align 6
.amdhsa_kernel {NAME}_kernel
  .amdhsa_next_free_vgpr 256
  .amdhsa_next_free_sgpr 102
  .amdhsa_accum_offset 256
  .amdhsa_group_segment_fixed_size 0
  .amdhsa_kernarg_size 104
  .amdhsa_user_sgpr_count 2
  .amdhsa_user_sgpr_kernarg_segment_ptr 1
  .amdhsa_system_sgpr_workgroup_id_x 1
.end_amdhsa_kernel
"""
        if self.stamps: out = "; names=" + ",".join(self.names) + "\n" + out
        print(f"nops added: {added}, lines: {len(lines)}", file=sys.stderr)
        return out

if __name__ == "__main__":
    import argparse
    p = argparse.ArgumentParser()
    p.add_argument("-o", default="cdna_kernels/" + NAME + ".s")
    p.add_argument("--stop"); p.add_argument("--stamps", action="store_true")
    args = p.parse_args()
    open(args.o, "w").write(Gen(args.stop, args.stamps).build())
```

```python
import sys, math, struct, os
EXP = os.environ.get('EXP', '').split(',')
from dsl import *

NAME = "adaLN_cond__grouped_kv_mqa__dense_activation_silu__prompt"
def f2u(x): return struct.unpack("<I", struct.pack("<f", x))[0]

EPOCH, MODG, PFF, KVD, KVF = 0, 0x1000, 0xA000, 0x10000, 0x38000 + 0x2000
GRP0, GRPSZ = 0x50000, 368640
O_OFF, XA_OFF, ST_OFF, H1_OFF = 0, 81920, 163840, 172032
DBG = 0xC00000
KVT = 2624
RING, SLOT = 102400, 11264
AB = RING + 2*SLOT; KVX = AB + 2560
WKV = 136192
MISC = 161792; PART = MISC; CNT = MISC + 384; STX = MISC + 512
TT = 153600; TA2 = TT; TSB = TT + 1280; TGA = TT + 2560; TGB = TT + 2880; TRM = TT + 3584
UREG = 81920
R_WS, R_X, R_WQ, R_WO, R_W1, R_W2, R_OUT, R_WKV, R_WM, R_C = 32, 36, 40, 44, 48, 52, 56, 60, 64, 68
sG, sJ, sW, sTAG, sSAME, sSPIN, sGB, sCG = 72, 73, 74, 75, 76, 77, 78, 79
sJ160 = 30; sXCC = 31
T0 = 80
vL, vL16, vP, vTR = 0, 1, 2, 7

class Gen:
    def __init__(self, stop=None, stamps=False):
        self.a = Asm(); self.stop = stop; self.stamps = stamps; self.nstamp = 0; self.force_sets = [()]; self.names = ['start']

    def stamp(self, name):
        if not self.stamps: return
        only = os.environ.get("ONLY")
        if only and not any(name.startswith(o) for o in only.split(",")): return
        a = self.a
        self.names.append(name.replace(" ", "_"))
        a.c(f"stamp {self.nstamp}: {name}")
        a(f"s_memtime s[100:101]")
        a.wait_ds0()
        a(f"s_sub_u32 s{4+self.nstamp}, s100, s97")
        self.nstamp += 1
        assert self.nstamp <= 24
    def dump_stamps(self):
        if not self.stamps: return
        a = self.a
        a(f"s_lshl_b32 s80, s2, 3\ns_add_u32 s80, s80, s{sW}\ns_lshl_b32 s80, s80, 7\ns_add_u32 s80, s80, {DBG + 0x1000000}")
        a("v_mov_b32 v9, 0\ns_memtime s[98:99]\ns_memrealtime s[100:101]\ns_waitcnt lgkmcnt(0)\ns_sub_u32 s98, s98, s97\ns_sub_u32 s100, s100, s4\nv_mov_b32 v8, s100")
        a(f"buffer_store_dword v8, v9, s[{R_WS}:{R_WS+3}], s80 offen offset:120\nv_mov_b32 v8, s98")
        a(f"buffer_store_dword v8, v9, s[{R_WS}:{R_WS+3}], s80 offen offset:124")
        for i in range(self.nstamp):
            a(f"v_mov_b32 v8, s{4+i}")
            a(f"buffer_store_dword v8, v9, s[{R_WS}:{R_WS+3}], s80 offen offset:{4*i}")
        if 'dbgout' in EXP:
            a("s_load_dwordx2 s[44:45], s[0:1], 88\ns_waitcnt lgkmcnt(0)\ns_mov_b32 s46, 256\ns_mov_b32 s47, 0x20000")
            a(f"s_xor_b32 s80, s2, 77\ns_or_b32 s80, s80, s{sW}\ns_cmp_lg_u32 s80, 0\ns_cbranch_scc1 L_skip_dbg")
            for i in range(min(self.nstamp, 16)):
                a(f"v_mov_b32 v8, s{(4+i) if i else 100}")
                a(f"buffer_store_dword v8, v9, s[44:47], 0 offen offset:{4*i}")
            a.label("L_skip_dbg")
        a.wait_vm0()
    def dump(self, regs, slot):
        a = self.a
        n = len(regs)
        a(f"s_lshl_b32 s80, s2, 3\ns_add_u32 s80, s80, s{sW}\ns_mul_i32 s80, s80, {n*256}\ns_add_u32 s80, s80, {DBG + slot*0x200000}")
        a(f"v_lshlrev_b32 v9, 2, v{vL}")
        a("s_nop 15")
        for i, r in enumerate(regs):
            a(f"buffer_store_dword v{r}, v9, s[{R_WS}:{R_WS+3}], s80 offen")
            a("s_add_u32 s80, s80, 256")
        a.wait_vm0()

    def srd(self, r, ptr, nbytes):
        self.a(f"s_mov_b32 s{r}, s{ptr}\ns_mov_b32 s{r+1}, s{ptr+1}\ns_mov_b32 s{r+2}, {nbytes}\ns_mov_b32 s{r+3}, 0x20000")

    def spin_tail(self, loop, cond="vccnz"):
        a = self.a
        out = a.newlabel("spinout")
        if cond == "vccnz":
            a(f"s_cbranch_vccz {out}")
        else:
            a(f"s_cbranch_scc0 {out}")
        a(f"s_sub_u32 s{sSPIN}, s{sSPIN}, 1\ns_cbranch_scc1 {out}_x\ns_branch {loop}")
        a.label(out + "_x")
        a(f"s_mov_b32 s{sSPIN}, 0")
        a.label(out)

    def n80_block(self, srd, m0_s, soff_s, tag=None, optional=False):
        a = self.a
        for u in range(5):
            a(f"s_mov_b32 m0, s{m0_s}\ns_add_u32 s{m0_s}, s{m0_s}, 1024")
            a.vm(f"buffer_load_dwordx4 v{vP+u}, s[{srd}:{srd+3}], s{soff_s} offen lds", tag, optional)

    def reduce_g4_pair(self, A, B, t):
        a = self.a
        a(f"v_permlane16_swap_b32 v{A}, v{B}")
        a(f"v_add_f32 v{A}, v{A}, v{B}")
        a(f"v_mov_b32 v{t}, v{A}")
        a(f"v_permlane32_swap_b32 v{A}, v{t}")
        a(f"v_add_f32 v{A}, v{A}, v{t}")
        a(f"v_mov_b32 v{B}, v{A}")
        a(f"v_permlane16_swap_b32 v{A}, v{B}")

    def prologue(self):
        a = self.a
        XR, XN, ABT, DT, WF, ACC, AKV = 16, 56, 136, 152, 160, 200, 220
        MW, MC, MA = 228, 244, 246
        a("s_cmp_ge_u32 s2, 256\ns_cbranch_scc1 L_end")
        if self.stamps: a("s_memrealtime s[100:101]\ns_memtime s[98:99]")
        a("s_load_dwordx16 s[4:19], s[0:1], 0\ns_load_dwordx8 s[20:27], s[0:1], 64\ns_load_dwordx2 s[28:29], s[0:1], 96")
        a(f"v_lshrrev_b32 v8, 6, v0\nv_and_b32 v{vL}, 63, v0")
        a(f"v_readfirstlane_b32 s{sW}, v8 ; wave")
        a(f"""s_and_b32 s80, s2, 7
              s_lshr_b32 s81, s2, 3
              s_lshr_b32 s82, s81, 3
              s_lshl_b32 s83, s80, 2
              s_add_u32 s{sG}, s83, s82
              s_and_b32 s{sJ}, s81, 7
              s_lshr_b32 s82, s81, 2
              s_lshl_b32 s82, s82, 5
              s_add_u32 s82, s82, s83
              s_and_b32 s81, s81, 3
              s_add_u32 s{sCG}, s82, s81
              s_mul_i32 s{sGB}, s{sG}, {GRPSZ}
              s_add_u32 s{sGB}, s{sGB}, {GRP0}
              s_mul_i32 s{sJ160}, s{sJ}, 160
              s_mov_b32 s{sSPIN}, 0x40000
              s_getreg_b32 s{sXCC}, hwreg(HW_REG_XCC_ID)
              s_and_b32 s{sXCC}, s{sXCC}, 15""")
        a(f"v_lshlrev_b32 v{vL16}, 4, v{vL}")
        a(f"""v_lshrrev_b32 v8, 1, v{vL}
              s_lshl_b32 s80, s{sW}, 5
              v_add_u32 v8, s80, v8
              v_lshlrev_b32 v9, 3, v8
              v_mul_u32_u24 v8, 30720, v8
              v_and_b32 v10, 1, v{vL}
              v_lshlrev_b32 v10, 4, v10
              s_lshl_b32 s81, s{sCG}, 5
              v_add3_u32 v8, v8, v10, s81
              v_mov_b32 v11, 0
              v_mov_b32 v12, {CNT}""")
        a.wait_ds0()
        self.srd(R_WS, 28, 0x2000000 if (self.stamps or self.stop) else GRP0 + 32*GRPSZ)
        self.srd(R_WM, 22, 640*3840*2 if 'nomod' not in EXP else 0); self.srd(R_C, 20, 1280)
        if self.stamps: a("s_mov_b32 s96, s100\ns_mov_b32 s97, s98")
        a.vm(f"buffer_load_dword v13, v11, s[{R_WS}:{R_WS+3}], 0 offen sc1", "epoch")
        a(f"s_cmp_lt_u32 s{sW}, 5\ns_cselect_b32 s82, s{sCG}, 255\ns_cmp_lt_u32 s82, 240\ns_cselect_b32 s83, 1, 0")
        a("s_cbranch_scc0 L_skip_modld")
        a.vm(f"buffer_load_dwordx2 v[{MC}:{MC+1}], v9, s[{R_C}:{R_C+3}], 0 offen", "mod", optional=True)
        for r in range(4):
            a(f"s_mov_b32 s84, {7680*r}")
            a.vm(f"buffer_load_dwordx4 v[{MW+4*r}:{MW+4*r+3}], v8, s[{R_WM}:{R_WM+3}], s84 offen", "mod", optional=True)
        a.label("L_skip_modld")
        self.srd(R_X, 4, 2048*1280)
        a(f"""v_and_b32 v8, 15, v{vL}
              v_lshrrev_b32 v9, 4, v{vL}
              v_mul_u32_u24 v10, 1280, v8
              v_lshl_add_u32 v10, v9, 4, v10
              s_lshr_b32 s84, s{sW}, 1
              s_lshl_b32 s85, s{sG}, 2
              s_add_u32 s85, s85, s84
              s_mul_i32 s85, s85, {16*1280}
              s_and_b32 s86, s{sW}, 1
              s_mul_i32 s87, s86, 640
              s_add_u32 s85, s85, s87""")
        if 'nox' in EXP: a(f"s_mov_b32 s{R_X+2}, 0")
        for k in range(10):
            a.vm(f"buffer_load_dwordx4 v[{XR+4*k}:{XR+4*k+3}], v10, s[{R_X}:{R_X+3}], s85 offen offset:{64*k}", "x")
        a.ds(f"ds_write_b32 v12, v11")
        a.ds(f"ds_write_b32 v12, v11 offset:4")
        self.srd(R_WQ, 6, 640*1280); self.srd(R_WO, 12, 640*1280); self.srd(R_W1, 16, 640*3072); self.srd(R_W2, 18, 1536*1280)
        self.srd(R_OUT, 24, 2048*1280)
        a(f"s_cmp_lt_u32 s{sJ}, 4\ns_cselect_b32 s{R_WKV}, s8, s10\ns_cselect_b32 s{R_WKV+1}, s9, s11\ns_mov_b32 s{R_WKV+2}, 25600\ns_mov_b32 s{R_WKV+3}, 0x20000")
        if self.stamps: a("s_mov_b32 s4, s96"); self.nstamp = 1
        for u in range(5):
            a(f"""v_add_u32 v12, {64*u}, v{vL}
                  v_mul_u32_u24 v14, 6554, v12
                  v_lshrrev_b32 v14, 16, v14
                  v_mul_u32_u24 v15, 10, v14
                  v_sub_u32 v12, v12, v15
                  v_bfe_u32 v15, v14, 2, 2
                  v_lshlrev_b32 v15, 3, v15
                  v_and_b32 v{vP+u}, 3, v14
                  v_add_u32 v15, v15, v{vP+u}
                  v_lshrrev_b32 v14, 4, v14
                  v_lshl_add_u32 v15, v14, 2, v15
                  v_mul_u32_u24 v15, 1280, v15
                  v_lshl_add_u32 v{vP+u}, v12, 4, v15""")
        a(f"""v_lshrrev_b32 v12, 2, v{vL}
              v_mul_u32_u24 v12, 160, v12
              v_and_b32 v14, 3, v{vL}
              v_lshl_add_u32 v{vTR}, v14, 3, v12""")
        if 'nodma' in EXP: a(f"s_mov_b32 s{R_WQ+2}, 0\ns_mov_b32 s{R_WKV+2}, 0")
        a.wait_ds0()
        self.stamp("issued")
        a("s_barrier")
        a(f"s_cmp_lt_u32 s{sW}, 5\ns_cbranch_scc1 L_skip_dma0")
        a(f"s_cmp_lg_u32 s{sW}, 5\ns_cbranch_scc1 L_skip_wkv")
        a(f"s_mov_b32 s88, {WKV}\ns_mov_b32 s89, 0")
        a.label("L_wkv")
        a(f"s_mov_b32 m0, s88\ns_add_u32 s88, s88, 1024")
        a.vm(f"buffer_load_dwordx4 v{vL16}, s[{R_WKV}:{R_WKV+3}], s89 offen lds", "dma0", optional=True)
        a(f"s_add_u32 s89, s89, 1024\ns_cmp_lt_u32 s89, 25600\ns_cbranch_scc1 L_wkv")
        a.label("L_skip_wkv")
        a(f"""s_cmp_eq_u32 s{sW}, 5
              s_cselect_b32 s88, 0, 3
              s_cselect_b32 s90, 3, 12
              s_cmp_eq_u32 s{sW}, 7
              s_cselect_b32 s88, 12, s88
              s_cselect_b32 s90, 20, s90
              s_mul_i32 s89, s88, 40960
              s_add_u32 s89, s89, s{sJ160}
              s_mul_i32 s88, s88, 5120
              s_mul_i32 s90, s90, 5120""")
        a.label("L_wq")
        self.n80_block(R_WQ, 88, 89, "dma0", optional=True)
        a("s_add_u32 s89, s89, 40960\ns_cmp_lt_u32 s88, s90\ns_cbranch_scc1 L_wq")
        a("s_waitcnt vmcnt(40)\ns_branch L_tag")
        a.label("L_skip_dma0")
        a("s_waitcnt vmcnt(10)")
        a.label("L_tag")
        self.stamp("tag")
        a(f"v_readfirstlane_b32 s{sTAG}, v13")
        a(f"s_mul_i32 s{sTAG}, s{sTAG}, 1664525\ns_add_u32 s{sTAG}, s{sTAG}, 1013904223")
        a("s_cmp_eq_u32 s83, 0\ns_cbranch_scc1 L_skip_mod")
        c0 = 8
        a(f"""v_lshlrev_b32 v8, 16, v{MC}
              v_and_b32 v9, 0xffff0000, v{MC}
              v_lshlrev_b32 v10, 16, v{MC+1}
              v_and_b32 v11, 0xffff0000, v{MC+1}""")
        for r in range(4): a(f"v_mul_f32 v{12+r}, {hex(f2u(-math.log2(math.e)))}, v{8+r}")
        for r in range(4): a(f"v_exp_f32 v{12+r}, v{12+r}")
        for r in range(4): a(f"v_add_f32 v{12+r}, 1.0, v{12+r}")
        for r in range(4): a(f"v_rcp_f32 v{12+r}, v{12+r}")
        for r in range(4): a(f"v_mul_f32 v{8+r}, v{8+r}, v{12+r}")
        for r in range(4):
            for d in range(4):
                w = MW + 4*r + d
                a(f"v_lshlrev_b32 v12, 16, v{w}\nv_and_b32 v13, 0xffff0000, v{w}")
                if r == 0: a(f"v_mul_f32 v{MA+2*d}, v8, v12\nv_mul_f32 v{MA+2*d+1}, v8, v13")
                else: a(f"v_fmac_f32 v{MA+2*d}, v{8+r}, v12\nv_fmac_f32 v{MA+2*d+1}, v{8+r}, v13")
        for i in range(4): a(f"v_permlane32_swap_b32 v{MA+i}, v{MA+4+i}")
        for i in range(4): a(f"v_add_f32 v{MA+i}, v{MA+i}, v{MA+4+i}")
        for i in range(2): a(f"v_permlane16_swap_b32 v{MA+i}, v{MA+2+i}")
        for i in range(2): a(f"v_add_f32 v{MA+i}, v{MA+i}, v{MA+2+i}")
        for m in ("row_ror:8", "row_ror:4", "quad_perm:[2,3,0,1]"):
            for i in range(2): a(f"v_add_f32_dpp v{MA+i}, v{MA+i}, v{MA+i} {m} row_mask:0xf bank_mask:0xf")
        a(f"""v_and_b32 v8, 1, v{vL}
              v_lshlrev_b32 v8, 5, v8
              v_bfe_u32 v9, v{vL}, 4, 1
              v_lshl_add_u32 v8, v9, 3, v8
              v_lshrrev_b32 v9, 5, v{vL}
              v_lshl_add_u32 v8, v9, 4, v8
              s_lshl_b32 s84, s{sW}, 6
              s_add_u32 s84, s84, {PART}
              v_add_u32 v8, s84, v8
              v_mov_b32 v10, {CNT}
              v_mov_b32 v11, 1
              s_mov_b32 exec_lo, 0x00030003
              s_mov_b32 exec_hi, 0x00030003""")
        a.ds(f"ds_write_b64 v8, v[{MA}:{MA+1}]")
        a("s_mov_b64 exec, 1")
        a.wait_ds0()
        a.ds("ds_add_u32 v10, v11")
        a("s_mov_b64 exec, -1")
        a(f"s_cmp_lg_u32 s{sW}, 0\ns_cbranch_scc1 L_skip_mod")
        a.label("L_modspin")
        a.ds("ds_read_b32 v11, v10"); a.wait_ds0()
        a("v_cmp_gt_u32 vcc, 5, v11")
        self.spin_tail("L_modspin")
        a(f"v_lshlrev_b32 v8, 2, v{vL}\nv_add_u32 v8, {PART}, v8\ns_mov_b64 exec, 0xffff")
        for w in range(5): a.ds(f"ds_read_b32 v{MA+w}, v8 offset:{64*w}")
        a(f"v_lshlrev_b32 v8, 3, v{vL}\ns_lshl_b32 s84, s{sCG}, 7\ns_add_u32 s84, s84, {MODG}\nv_mov_b32 v11, s{sTAG}")
        a.wait_ds0()
        a(f"v_add_f32 v{MA}, v{MA}, v{MA+1}\nv_add_f32 v{MA+2}, v{MA+2}, v{MA+3}\nv_add_f32 v{MA}, v{MA}, v{MA+4}\nv_add_f32 v10, v{MA}, v{MA+2}")
        a.vm(f"buffer_store_dwordx2 v[10:11], v8, s[{R_WS}:{R_WS+3}], s84 offen sc1", "modst", optional=True)
        a("s_mov_b64 exec, -1")
        self.stamp("mod published")
        a("s_waitcnt vmcnt(1)\ns_branch L_xin")
        a.label("L_skip_mod")
        a(f"s_cmp_ge_u32 s{sW}, 5\ns_cbranch_scc1 L_xin")
        a("s_waitcnt vmcnt(0)")
        a.label("L_xin")
        a.wait_ds0(); a.vmq = []
        self.stamp("x landed")
        a("s_mov_b32 s84, 0x3f803f80")
        for k in range(40):
            if k == 0: a(f"v_dot2_f32_bf16 v8, v{XR}, s84, 0\nv_dot2_f32_bf16 v9, v{XR}, v{XR}, 0")
            else: a(f"v_dot2_f32_bf16 v8, v{XR+k}, s84, v8\nv_dot2_f32_bf16 v9, v{XR+k}, v{XR+k}, v9")
        self.reduce_g4_pair(8, 9, 10)
        a(f"""v_and_b32 v10, 15, v{vL}
              v_lshlrev_b32 v10, 3, v10
              s_lshl_b32 s84, s{sW}, 7
              s_add_u32 s84, s84, {STX}
              v_add_u32 v11, s84, v10
              s_xor_b32 s84, s84, 128
              v_add_u32 v10, s84, v10""")
        a.ds("ds_write_b64 v11, v[8:9]"); a.wait_ds0()
        a("s_barrier")
        a.ds("ds_read_b64 v[12:13], v10"); a.wait_ds0()
        a(f"""v_add_f32 v8, v8, v12
              v_add_f32 v9, v9, v13
              v_mul_f32 v8, {hex(f2u(1/640))}, v8
              v_mul_f32 v9, {hex(f2u(1/640))}, v9
              v_fma_f32 v9, -v8, v8, v9
              v_max_f32 v9, 0, v9
              v_add_f32 v9, {hex(f2u(1e-5))}, v9
              v_rsq_f32 v9, v9
              s_nop 0
              v_mul_f32_e64 v8, -v8, v9""")
        for k in range(40):
            a(f"""v_lshlrev_b32 v12, 16, v{XR+k}
                  v_and_b32 v13, 0xffff0000, v{XR+k}
                  v_fma_f32 v12, v12, v9, v8
                  v_fma_f32 v13, v13, v9, v8
                  v_cvt_pk_bf16_f32 v{XN+2*k}, v12, 1.0
                  v_cvt_pk_bf16_f32 v{XN+2*k+1}, v13, 1.0""")
        self.stamp("xn ready")
        a(f"s_cmp_ge_u32 s{sW}, 5\ns_cbranch_scc1 L_skip_gather")
        a(f"s_lshl_b32 s84, s{sW}, 10\ns_add_u32 s85, s84, {MODG}\ns_add_u32 s86, s84, {MODG + 5120}")
        a.label("L_gather")
        a.vm(f"buffer_load_dwordx4 v[8:11], v{vL16}, s[{R_WS}:{R_WS+3}], s85 offen sc1", track=False)
        a.vm(f"buffer_load_dwordx4 v[12:15], v{vL16}, s[{R_WS}:{R_WS+3}], s86 offen sc1", track=False)
        a("s_waitcnt vmcnt(0)")
        a(f"""v_cmp_ne_u32 vcc, s{sTAG}, v9
              v_cmp_ne_u32 s[88:89], s{sTAG}, v11
              v_cmp_ne_u32 s[90:91], s{sTAG}, v13
              v_cmp_ne_u32 s[92:93], s{sTAG}, v15
              s_or_b64 vcc, vcc, s[88:89]
              s_or_b64 s[90:91], s[90:91], s[92:93]
              s_or_b64 vcc, vcc, s[90:91]""")
        self.spin_tail("L_gather")
        a(f"""v_add_f32 v12, 1.0, v12
              v_add_f32 v14, 1.0, v14
              v_cvt_pk_bf16_f32 v8, v12, v8
              v_cvt_pk_bf16_f32 v9, v14, v10
              s_lshl_b32 s84, s{sW}, 9
              s_add_u32 s84, s84, {AB}
              v_lshl_add_u32 v10, v{vL}, 3, s84""")
        a.ds("ds_write_b64 v10, v[8:9]")
        a.label("L_skip_gather")
        a.wait0()
        a("s_barrier")
        self.stamp("mod gathered")
        a(f"""s_and_b32 s86, s{sW}, 1
              s_mul_i32 s84, s86, 1280
              s_add_u32 s84, s84, {AB}
              v_lshrrev_b32 v9, 4, v{vL}
              v_lshl_add_u32 v8, v9, 5, s84
              s_mul_i32 s84, s86, 51200
              v_add_u32 v10, s84, v{vTR}""")
        H = XR
        def ab_read(k):
            t = ABT + 8*(k & 1)
            a.ds(f"ds_read_b128 v[{t}:{t+3}], v8 offset:{128*k}", f"ab{k}")
            a.ds(f"ds_read_b128 v[{t+4}:{t+7}], v8 offset:{128*k+16}", f"ab{k}")
        def apply_ops(k):
            t = ABT + 8*(k & 1); L = []
            for e in range(8): L.append(f"v_dot2_f32_bf16 v{DT+e}, v{t+e}, v{XN+8*k+e}, 0")
            for e in range(4): L.append(f"v_cvt_pk_bf16_f32 v{H+4*k+e}, v{DT+2*e}, v{DT+2*e+1}")
            return L
        def qproj(with_apply):
            D = 5; NF = 50
            def issue(f):
                k, T = divmod(f, 5); r = WF + 4*(f % 10)
                a.ds(f"ds_read_b64_tr_b16 v[{r}:{r+1}], v10 offset:{k*5120 + T*32}", f"w{f}")
                a.ds(f"ds_read_b64_tr_b16 v[{r+2}:{r+3}], v10 offset:{k*5120 + 2560 + T*32}", f"w{f}")
            if with_apply:
                ab_read(0); ab_read(1)
            for f in range(D): issue(f)
            if with_apply:
                a.wait(ds="ab0")
                for op in apply_ops(0): a(op)
            for f in range(NF):
                k, T = divmod(f, 5); r = WF + 4*(f % 10)
                pend = []
                if with_apply and k + 1 < 10:
                    ops = apply_ops(k + 1)
                    if T == 0:
                        a.wait(ds=f"ab{k+1}")
                    pend = ops[[0,3,6,8,10][T]:[3,6,8,10,12][T]]
                a.wait(ds=f"w{f}")
                a(f"v_mfma_f32_16x16x32_bf16 v[{ACC+4*T}:{ACC+4*T+3}], v[{r}:{r+3}], v[{H+4*k}:{H+4*k+3}], " + ("0" if k == 0 else f"v[{ACC+4*T}:{ACC+4*T+3}]"))
                if f + D < NF: issue(f + D)
                if with_apply and T == 3 and k + 2 < 10: ab_read(k + 2)
                for op in pend: a(op)
        a(f"s_lshr_b32 s84, s{sW}, 1\ns_and_b32 s85, s{sJ}, 3\ns_cmp_eq_u32 s84, s85\ns_cbranch_scc1 L_kvwave")
        qproj(True)
        a("s_branch L_qdone")
        a.label("L_kvwave")
        a.dsq = []
        a("s_setprio 2")
        a(f"""v_lshrrev_b32 v11, 4, v{vL}
              v_bfe_u32 v12, v{vL}, 2, 2
              v_lshl_add_u32 v11, v11, 3, v12
              v_mul_u32_u24 v11, 40, v11
              v_and_b32 v12, 3, v{vL}
              v_lshl_add_u32 v11, v12, 3, v11
              s_mul_i32 s84, s86, {320*40}
              s_add_u32 s84, s84, {WKV}
              v_add_u32 v11, s84, v11""")
        def kv_issue(k):
            r = WF + 8*(k & 1)
            for T in range(2):
                a.ds(f"ds_read_b64_tr_b16 v[{r+4*T}:{r+4*T+1}], v11 offset:{k*1280 + T*32}", f"kv{k}")
                a.ds(f"ds_read_b64_tr_b16 v[{r+4*T+2}:{r+4*T+3}], v11 offset:{k*1280 + 160 + T*32}", f"kv{k}")
        for isv in (0, 1):
            if isv == 0: a(f"s_cmp_ge_u32 s{sJ}, 4\ns_cbranch_scc1 L_vwave")
            else: a.label("L_vwave"); a.dsq = []
            ab_read(0); kv_issue(0); ab_read(1); kv_issue(1)
            for k in range(10):
                a.wait(ds=f"ab{k}")
                ops = apply_ops(k)
                for op in ops[:8]: a(op)
                if k + 2 < 10: ab_read(k + 2)
                for op in ops[8:]: a(op)
                a.wait(ds=f"kv{k}")
                r = WF + 8*(k & 1)
                for T in range(2):
                    w_ = f"v[{r+4*T}:{r+4*T+3}]"; h_ = f"v[{H+4*k}:{H+4*k+3}]"
                    A_, B_ = (w_, h_) if isv == 0 else (h_, w_)
                    a(f"v_mfma_f32_16x16x32_bf16 v[{AKV+4*T}:{AKV+4*T+3}], {A_}, {B_}, " + ("0" if k == 0 else f"v[{AKV+4*T}:{AKV+4*T+3}]"))
                if k + 2 < 10: kv_issue(k + 2)
            if isv == 0: a("s_branch L_kvred")
        a.label("L_kvred")
        a.dsq = []
        a(f"v_add_u32 v12, {KVX}, v{vL16}\nv_mov_b32 v13, {CNT+4}")
        a("s_cmp_eq_u32 s86, 0\ns_cbranch_scc1 L_kv_b0")
        a.ds(f"ds_write_b128 v12, v[{AKV}:{AKV+3}]")
        a.ds(f"ds_write_b128 v12, v[{AKV+4}:{AKV+7}] offset:1024")
        a("v_mov_b32 v14, 1")
        a.wait_ds0()
        a.ds("ds_write_b32 v13, v14")
        a("s_branch L_kv_done")
        a.label("L_kv_b0")
        a.dsq = []
        a(f"""s_lshr_b32 s87, s85, 1
              s_lshl_b32 s88, s{sG}, 1
              s_add_u32 s87, s87, s88
              s_mul_i32 s87, s87, {KVT}
              s_add_u32 s87, s87, {KVD}
              s_and_b32 s88, s85, 1
              v_and_b32 v14, 15, v{vL}
              v_lshrrev_b32 v15, 4, v{vL}
              v_mov_b32 v{DT+2}, 0x7fffffff
              s_cmp_ge_u32 s{sJ}, 4
              s_cbranch_scc1 L_kv_voff""")
        a(f"""s_lshl_b32 s89, s88, 4
              v_add_u32 v14, s89, v14
              v_lshrrev_b32 v{DT}, 1, v15
              v_lshl_add_u32 v{DT}, v{DT}, 5, v14
              v_lshlrev_b32 v{DT}, 4, v{DT}
              v_and_b32 v{DT+1}, 1, v15
              v_lshl_add_u32 v{DT}, v{DT+1}, 3, v{DT}
              v_lshlrev_b32 v{DT+1}, 3, v14
              v_add_u32 v{DT+1}, 1024, v{DT+1}
              v_cmp_eq_u32 vcc, 0, v15
              v_cndmask_b32 v{DT+1}, v{DT+2}, v{DT+1}, vcc
              s_mov_b64 s[90:91], 0
              s_branch L_kv_spin""")
        a.label("L_kv_voff")
        a(f"""s_mul_i32 s89, s88, 672
              s_add_u32 s89, s89, 1280
              v_and_b32 v{DT}, 1, v15
              v_mul_u32_u24 v{DT}, 336, v{DT}
              v_lshl_add_u32 v{DT}, v14, 4, v{DT}
              v_lshrrev_b32 v{DT+1}, 1, v15
              v_lshl_add_u32 v{DT}, v{DT+1}, 3, v{DT}
              v_add_u32 v{DT}, s89, v{DT}
              v_add_u32 v{DT+1}, 256, v{DT}
              v_cmp_ge_u32 vcc, 4, v14
              v_cndmask_b32 v{DT+1}, v{DT+2}, v{DT+1}, vcc
              v_cmp_eq_u32 s[90:91], 4, v14""")
        a.label("L_kv_spin")
        a.ds("ds_read_b32 v14, v13"); a.wait_ds0()
        a("v_cmp_eq_u32 vcc, 0, v14")
        self.spin_tail("L_kv_spin")
        a.ds(f"ds_read_b128 v[{ABT}:{ABT+3}], v12")
        a.ds(f"ds_read_b128 v[{ABT+4}:{ABT+7}], v12 offset:1024")
        a("v_mov_b32 v15, 0x3f803f80")
        a.wait_ds0()
        for e in range(8): a(f"v_add_f32 v{AKV+e}, v{AKV+e}, v{ABT+e}")
        for e in range(4): a(f"v_cvt_pk_bf16_f32 v{ABT+e}, v{AKV+2*e}, v{AKV+2*e+1}")
        a(f"v_cndmask_b32 v{ABT+2}, v{ABT+2}, v15, s[90:91]\nv_cndmask_b32 v{ABT+3}, v{ABT+3}, v15, s[90:91]")
        a.vm(f"buffer_store_dwordx2 v[{ABT}:{ABT+1}], v{DT}, s[{R_WS}:{R_WS+3}], s87 offen sc1")
        a.vm(f"buffer_store_dwordx2 v[{ABT+2}:{ABT+3}], v{DT+1}, s[{R_WS}:{R_WS+3}], s87 offen sc1")
        a(f"""s_lshl_b32 s87, s{sG}, 3
              s_add_u32 s87, s87, s{sJ}
              s_lshl_b32 s87, s87, 7
              s_add_u32 s87, s87, {KVF}
              v_mov_b32 v14, s{sTAG}
              v_mov_b32 v15, 0""")
        a.wait_vm0()
        a("s_mov_b64 exec, 1")
        a.vm(f"buffer_store_dword v14, v15, s[{R_WS}:{R_WS+3}], s87 offen sc1")
        a("s_mov_b64 exec, -1")
        a.label("L_kv_done")
        a("s_setprio 0")
        self.stamp("kv published")
        qproj(False)
        a.label("L_qdone")
        a.dsq = []; a.vmq = []
        self.stamp("qproj done")
        a(f"s_lshl_b32 s84, s{sW}, 12\ns_add_u32 s84, s84, {KVF}\nv_and_b32 v13, 31, v{vL}\nv_lshlrev_b32 v13, 7, v13")
        a.label("L_kvpoll")
        a.vm(f"buffer_load_dword v12, v13, s[{R_WS}:{R_WS+3}], s84 offen sc1", track=False)
        a("s_waitcnt vmcnt(0)")
        a(f"v_cmp_ne_u32 vcc, s{sTAG}, v12")
        self.spin_tail("L_kvpoll")
        self.stamp("kv flags seen")
        a("s_barrier")
        self.kv_dma(0); self.kv_dma(1)
        a(f"s_or_b32 s84, s2, s{sW}\ns_cmp_lg_u32 s84, 0\ns_cbranch_scc1 L_skip_epoch")
        a(f"v_mov_b32 v14, s{sTAG}\nv_mov_b32 v15, 0\ns_mov_b64 exec, 1")
        a.vm(f"buffer_store_dword v14, v15, s[{R_WS}:{R_WS+3}], 0 offen sc1", optional=True)
        a("s_mov_b64 exec, -1")
        a.label("L_skip_epoch")
        a(f"""s_lshr_b32 s84, s{sW}, 1
              s_mul_i32 s84, s84, {16*336}
              s_mul_i32 s85, s86, {64*336}
              s_add_u32 s84, s84, s85
              v_and_b32 v12, 15, v{vL}
              v_mul_u32_u24 v12, 336, v12
              v_lshrrev_b32 v13, 4, v{vL}
              v_lshl_add_u32 v12, v13, 4, v12
              v_add_u32 v12, s84, v12""")
        for T in range(5): a.ds(f"ds_write_b128 v12, v[{ACC+4*T}:{ACC+4*T+3}] offset:{64*T}")
        a(f"""s_lshr_b32 s84, s{sW}, 2
              s_mul_i32 s84, s84, {32*336}
              s_and_b32 s85, s{sW}, 3
              s_mul_i32 s85, s85, 80
              s_add_u32 s84, s84, s85
              v_and_b32 v12, 31, v{vL}
              v_mul_u32_u24 v12, 336, v12
              v_add_u32 v12, s84, v12
              v_lshrrev_b32 v13, 5, v{vL}
              v_lshl_add_u32 v14, v13, 5, v12
              v_mov_b32 v15, {hex(f2u(math.log2(math.e)/math.sqrt(20)))}
              v_cmp_eq_u32 vcc, 0, v13
              v_cndmask_b32 v13, 0, v15, vcc""")
        a.wait0()
        a("s_barrier")
        for pb in range(2):
            t = 32 + 12*pb
            a.ds(f"ds_read_b128 v[{t}:{t+3}], v14 offset:{pb*64*336}")
            a.ds(f"ds_read_b128 v[{t+4}:{t+7}], v14 offset:{pb*64*336+16}")
            a.ds(f"ds_read_b128 v[{t+8}:{t+11}], v12 offset:{pb*64*336+64}")
        self.att_addr()
        a.wait_ds0()
        for e in range(12): a(f"v_add_f32 v{32+e}, v{32+e}, v{44+e}")
        for e in range(12): a(f"v_mul_f32 v{32+e}, v{15 if e < 8 else 13}, v{32+e}")
        for e in range(4): a(f"v_cvt_pk_bf16_f32 v{80+e}, v{32+2*e}, v{33+2*e}")
        for e in range(2): a(f"v_cvt_pk_bf16_f32 v{70+e}, v{40+2*e}, v{41+2*e}")
        self.stamp("q ready")

    def kv_dma(self, chunk):
        a = self.a
        slot = chunk % 3
        a(f"s_lshl_b32 s94, s{sW}, 10\ns_add_u32 s95, s94, {KVD + chunk*4*KVT}\ns_add_u32 s94, s94, {RING + slot*SLOT}\ns_mov_b32 m0, s94")
        a(f"s_cmp_ge_u32 s{sW}, 3")
        a.vm(f"buffer_load_dwordx4 v{vL16}, s[{R_WS}:{R_WS+3}], s95 offen sc1 lds", f"kv{chunk}")
        lb = a.newlabel("skip_kv")
        a(f"s_cbranch_scc1 {lb}")
        a("s_add_u32 m0, s94, 8192\ns_add_u32 s95, s95, 8192")
        a.vm(f"buffer_load_dwordx4 v{vL16}, s[{R_WS}:{R_WS+3}], s95 offen sc1 lds", f"kv{chunk}", optional=True)
        a.label(lb)

    def att_addr(self):
        a = self.a
        a(f"""v_add_u32 v8, {RING}, v{vL16}
              v_and_b32 v9, 31, v{vL}
              v_min_u32 v10, 20, v9
              v_lshlrev_b32 v9, 3, v9
              v_add_u32 v9, {RING + 1024}, v9
              v_lshlrev_b32 v10, 4, v10
              v_lshrrev_b32 v11, 5, v{vL}
              v_mul_u32_u24 v11, 336, v11
              v_add_u32 v10, v10, v11
              v_add_u32 v10, {RING + 1280}, v10""")

    def attention(self):
        a = self.a
        O, S, K1, K2, Q2, V1, V2, Q1 = 16, (32, 48), 64, 68, 70, 72, 76, 80
        WP = 96
        def toff(t): return ((t // 4) % 3) * SLOT + (t % 4) * KVT
        def rdK(t):
            a.ds(f"ds_read_b128 v[{K1}:{K1+3}], v8 offset:{toff(t)}", f"K{t}")
            a.ds(f"ds_read_b64 v[{K2}:{K2+1}], v9 offset:{toff(t)}", f"K{t}")
        def rdV(t, f):
            r = (V1, V2)[f]
            a.ds(f"ds_read_b128 v[{r}:{r+3}], v10 offset:{toff(t) + 672*f}", f"V{t}_{f}")
        def qk1(t): a(f"v_mfma_f32_32x32x16_bf16 v[{S[t&1]}:{S[t&1]+15}], v[{K1}:{K1+3}], v[{Q1}:{Q1+3}], 0")
        def qk2(t): a(f"v_mfma_f32_32x32x8bf16_1k v[{S[t&1]}:{S[t&1]+15}], v[{K2}:{K2+1}], v[{Q2}:{Q2+1}], v[{S[t&1]}:{S[t&1]+15}]")
        a(f"""v_lshrrev_b32 v11, 4, v{vL}
              v_bfe_u32 v12, v{vL}, 2, 2
              v_lshl_add_u32 v12, v11, 3, v12
              v_mul_u32_u24 v12, 3072, v12
              v_and_b32 v11, 1, v11
              v_lshlrev_b32 v13, 1, v11
              v_and_b32 v14, 3, v{vL}
              v_xor_b32 v13, v13, v14
              v_lshl_add_u32 v15, v13, 4, v12
              s_and_b32 s84, s{sW}, 1
              v_xor_b32 v11, s84, v11
              v_lshlrev_b32 v11, 5, v11
              v_lshrrev_b32 v12, 2, v{vL}
              v_lshlrev_b32 v12, 6, v12
              v_lshl_add_u32 v12, v14, 3, v12
              s_mul_i32 s85, s{sW}, 10240
              v_add3_u32 v12, v12, v11, s85
              v_xor_b32 v13, 32, v12
              v_mov_b32 v11, v15
              s_lshr_b32 s86, s{sW}, 1
              s_mul_i32 s86, s86, 96
              s_lshl_b32 s84, s84, 5
              s_add_u32 s86, s86, s84
              s_mul_i32 s84, s{sJ}, 384
              s_add_u32 s86, s86, s84""")
        for e in range(4): a(f"v_mov_b32 v{92+e}, -1")
        def w1_dma(r):
            L = []
            for i in range(10):
                ks, half = divmod(i, 2)
                L.append(lambda i=i, ks=ks, half=half: (
                    a(f"s_add_u32 m0, s85, {i*1024}\ns_add_u32 s87, s86, {((5*r + ks)*32 + 4*half)*3072}"),
                    a.vm(f"buffer_load_dwordx4 v11, s[{R_W1}:{R_W1+3}], s87 offen lds", f"w1_{r}")))
            return L
        def w1_read(r):
            L = []
            for ks in range(5):
                for tile, ad in ((0, 12), (1, 13)):
                    d = WP + 80*tile + 4*(5*r + ks)
                    for half in range(2):
                        L.append(lambda d=d, ad=ad, ks=ks, half=half: a.ds(f"ds_read_b64_tr_b16 v[{d+2*half}:{d+2*half+1}], v{ad} offset:{ks*2048 + half*1024}", "w1r"))
            return L
        def prefill():
            L = []
            for i in range(6):
                L.append(lambda i=i: (
                    a(f"s_add_u32 s87, s{sW}, {8*i}\ns_min_u32 s87, s87, 44\ns_lshl_b32 s87, s87, 10\ns_add_u32 s87, s87, s88"),
                    a.vm(f"buffer_store_dwordx4 v[92:95], v{vL16}, s[{R_WS}:{R_WS+3}], s87 offen sc1", "pf")))
            return L
        a(f"s_mul_i32 s88, s{sJ}, 46080\ns_add_u32 s88, s88, s{sGB}")
        def pf_flag():
            lb = a.newlabel("skip_pff")
            a(f"""s_cmp_lg_u32 s{sW}, 0
                  s_cbranch_scc1 {lb}
                  s_lshl_b32 s87, s{sG}, 7
                  s_lshl_b32 s89, s{sJ}, 3
                  s_add_u32 s87, s87, s89
                  s_add_u32 s87, s87, {PFF}
                  v_mov_b32 v88, s{sTAG}
                  v_mov_b32 v89, s{sXCC}
                  v_mov_b32 v90, 0
                  s_mov_b64 exec, 1""")
            a.vm(f"buffer_store_dwordx2 v[88:89], v90, s[{R_WS}:{R_WS+3}], s87 offen sc1", optional=True)
            a("s_mov_b64 exec, -1")
            a.label(lb)
        def pf_load(track=True):
            a(f"s_lshl_b32 s87, s{sG}, 7\ns_add_u32 s87, s87, {PFF}\nv_and_b32 v90, 7, v{vL}\nv_lshlrev_b32 v90, 3, v90")
            a.vm(f"buffer_load_dwordx2 v[88:89], v90, s[{R_WS}:{R_WS+3}], s87 offen sc1", "pfl", track=track)
        def pf_check():
            a.wait(vm="pfl")
            lp = a.newlabel("pfspin"); ok = a.newlabel("pfok")
            a(f"v_cmp_ne_u32 vcc, s{sTAG}, v88\ns_cbranch_vccz {ok}")
            a.label(lp)
            pf_load(False)
            a(f"s_waitcnt vmcnt(0)\nv_cmp_ne_u32 vcc, s{sTAG}, v88")
            self.spin_tail(lp)
            a.label(ok)
            a(f"v_cmp_ne_u32 vcc, s{sXCC}, v89\ns_nop 0\ns_cmp_eq_u64 vcc, 0 ; same\ns_cselect_b32 s{sSAME}, 1, 0")
            if 'slow' in EXP: a(f"s_mov_b32 s{sSAME}, 0")
        def wo_dma(i):
            def f():
                lb = a.newlabel("skip_wo")
                a(f"s_add_u32 s87, s{sW}, {8*i}")
                if i == 2: a(f"s_cmp_ge_u32 s87, 20\ns_cbranch_scc1 {lb}")
                a(f"s_mul_i32 s89, s87, 5120\ns_mul_i32 s87, s87, 40960\ns_add_u32 s87, s87, s{sJ160}")
                self.n80_block(R_WO, 89, 87, "wo", optional=(i == 2))
                a.label(lb)
            return f
        def tab_load():
            lb = a.newlabel("skip_tab")
            a(f"""s_cmp_ge_u32 s{sW}, 6
                  s_cbranch_scc1 {lb}
                  s_lshl_b32 s87, s{sW}, 10
                  s_add_u32 s64, s87, {MODG + 2560*8}
                  s_add_u32 s65, s87, {MODG + 1920*8}
                  s_mul_i32 s87, s{sJ}, 640
                  s_add_u32 s89, s87, {MODG + 1280*8}
                  s_add_u32 s87, s87, {MODG + 3200*8}
                  s_cmp_eq_u32 s{sW}, 5
                  s_cselect_b32 s64, s89, s64
                  s_cselect_b32 s65, s87, s65""")
            a.vm(f"buffer_load_dwordx4 v[88:91], v{vL16}, s[{R_WS}:{R_WS+3}], s64 offen sc1", "tab", optional=True)
            a.vm(f"buffer_load_dwordx4 v[92:95], v{vL16}, s[{R_WS}:{R_WS+3}], s65 offen sc1", "tab", optional=True)
            a.label(lb)
        jobs = {s_: [] for s_ in range(16)}
        jobs[0] = w1_dma(0) + prefill()
        jobs[2] = w1_read(0) + w1_dma(1) + [pf_flag]
        jobs[4] = w1_read(1) + w1_dma(2)
        jobs[5] = [pf_load]
        jobs[6] = w1_read(2) + w1_dma(3)
        jobs[7] = [pf_check]
        jobs[8] = w1_read(3)
        jobs[9] = [wo_dma(0)]; jobs[10] = [wo_dma(1)]; jobs[11] = [wo_dma(2)]
        jobs[13] = [tab_load]
        queue = []
        def side(n):
            for _ in range(n):
                if queue:
                    f = queue.pop(0)
                    if 'noside' not in EXP: f()
        if 'twice' in EXP: a("s_mov_b32 s70, 0\nL_twice:\ns_barrier\ns_memtime s[100:101]\ns_waitcnt lgkmcnt(0)\ns_sub_u32 s5, s100, s97")
        if 'prio' in EXP: a(f"s_cmp_lt_u32 s{sW}, 4\ns_cbranch_scc1 L_noprio\ns_setprio 1\nL_noprio:")
        PB = 84
        rdK(0); rdV(0, 0)
        a.wait(ds="K0")
        qk1(0); qk2(0)
        rdK(1)
        for e in range(16): a(f"v_mov_b32 v{O+e}, 0")
        def pv2(t):
            a.wait(ds=f"V{t}_1")
            a(f"v_mfma_f32_32x32x16_bf16 v[{O}:{O+15}], v[{V2}:{V2+3}], v[{PB}:{PB+3}], v[{O}:{O+15}]")
        for t in range(64):
            c = S[t & 1]
            if t % 4 == 2 and t // 4 < 15:
                st = t // 4
                assert not queue
                self.stamp(f"pre{st}")
                a.wait(vm=f"kv{st+1}")
                self.stamp(f"vm{st}")
                if 'nobar' not in EXP: a("s_barrier")
                self.stamp(f"B{st}")
                if st + 2 < 16 and 'nokv' not in EXP: self.kv_dma(st + 2)
                queue.extend(jobs[st])
            per = -(-len(queue) // max(1, 4*(4 - (t - 2) % 4))) if queue else 0
            if t + 1 < 64:
                a.wait(ds=f"K{t+1}")
                qk1(t + 1)
            side(per)
            for e in range(0, 5): a(f"v_exp_f32 v{c+e}, v{c+e}")
            if t + 1 < 64: qk2(t + 1)
            if t + 2 < 64: rdK(t + 2)
            side(per)
            for e in range(5, 8): a(f"v_exp_f32 v{c+e}, v{c+e}")
            for e in range(4): a(f"v_cvt_pk_bf16_f32 v{c+e}, v{c+2*e}, v{c+2*e+1}")
            if t > 0: pv2(t - 1)
            rdV(t, 1)
            side(per)
            for e in range(8, 13): a(f"v_exp_f32 v{c+e}, v{c+e}")
            a.wait(ds=f"V{t}_0")
            a(f"v_mfma_f32_32x32x16_bf16 v[{O}:{O+15}], v[{V1}:{V1+3}], v[{c}:{c+3}], v[{O}:{O+15}]")
            if t + 1 < 64: rdV(t + 1, 0)
            side(per)
            for e in range(13, 16): a(f"v_exp_f32 v{c+e}, v{c+e}")
            for e in range(4): a(f"v_cvt_pk_bf16_f32 v{PB+e}, v{c+8+2*e}, v{c+9+2*e}")
        pv2(63)
        if 'twice' in EXP: a("s_add_u32 s70, s70, 1\ns_cmp_lt_u32 s70, 2\ns_nop 7\ns_nop 7\ns_cbranch_scc1 L_twice")
        assert not queue
        self.stamp("att loop done")
        a(f"""s_and_b32 s84, s{sW}, 3
              s_mul_i32 s84, s84, 5
              s_mul_i32 s85, s{sJ}, 20
              s_add_u32 s84, s84, s85
              v_lshrrev_b32 v32, 5, v{vL}
              v_add_u32 v33, s84, v32
              v_and_b32 v34, 15, v{vL}
              v_lshlrev_b32 v34, 4, v34
              v_bfe_u32 v35, v{vL}, 4, 1
              v_mul_u32_u24 v35, 20480, v35
              v_add_u32 v34, v34, v35
              v_lshrrev_b32 v35, 1, v33
              v_lshl_add_u32 v35, v35, 8, v34
              v_and_b32 v33, 1, v33
              v_lshl_add_u32 v35, v33, 3, v35
              s_add_u32 s84, s84, 4
              s_lshr_b32 s85, s84, 1
              s_lshl_b32 s85, s85, 8
              s_and_b32 s84, s84, 1
              s_lshl_b32 s84, s84, 3
              s_add_u32 s84, s84, s85
              v_add_u32 v34, s84, v34
              v_mov_b32 v33, 0x7fffffff
              v_cmp_eq_u32 vcc, 0, v32
              v_cndmask_b32 v34, v33, v34, vcc
              s_lshr_b32 s84, s{sW}, 2
              s_mul_i32 s84, s84, 40960
              s_add_u32 s84, s84, s{sGB}""")
        a(f"v_add_f32 v36, |v{O}|, |v{O+1}|".replace("v_add_f32", "v_add_f32_e64"))
        for e in range(2, 12): a(f"v_add_f32_e64 v36, v36, |v{O+e}|")
        a(f"""v_mov_b32 v37, 0x7f800000
              v_cmp_nlt_f32 vcc, v36, v37
              v_cmp_nlt_f32 s[88:89], v{O+12}, {hex(f2u(2.0**60))}
              v_cmp_ngt_f32 s[90:91], v{O+12}, {hex(f2u(2.0**-60))}""".replace(f"v_cmp_nlt_f32 s[88:89], v{O+12}, {hex(f2u(2.0**60))}", f"s_mov_b32 s92, {hex(f2u(2.0**60))}\nv_cmp_ngt_f32 s[88:89], s92, v{O+12}").replace(f"v_cmp_ngt_f32 s[90:91], v{O+12}, {hex(f2u(2.0**-60))}", f"s_mov_b32 s93, {hex(f2u(2.0**-60))}\nv_cmp_nlt_f32 s[90:91], s93, v{O+12}"))
        a("s_or_b64 vcc, vcc, s[88:89]\ns_or_b64 vcc, vcc, s[90:91]")
        a("s_cbranch_vccnz L_fallback")
        a.label("L_att_norm")
        a(f"v_rcp_f32 v36, v{O+12}")
        for e in range(12): a(f"v_mul_f32 v{O+e}, v{O+e}, v36")
        for e in range(6): a(f"v_cvt_pk_bf16_f32 v{O+e}, v{O+2*e}, v{O+2*e+1}")
        self.pub_stores([f"buffer_store_dwordx2 v[{O}:{O+1}], v35, s[{R_WS}:{R_WS+3}], s84 offen",
                         f"buffer_store_dwordx2 v[{O+2}:{O+3}], v35, s[{R_WS}:{R_WS+3}], s84 offen offset:256",
                         f"buffer_store_dwordx2 v[{O+4}:{O+5}], v34, s[{R_WS}:{R_WS+3}], s84 offen"], "ost")
        self.stamp("o stored")

    def check_frags(self, regs_list, acc, first):
        for i, r in enumerate(regs_list):
            if first and i == 0: self.a(f"v_max_u32 v{acc}, v{r+1}, v{r+3}")
            else: self.a(f"v_max3_u32 v{acc}, v{acc}, v{r+1}, v{r+3}")

    def n80_gemm(self, nk, xreg, acc, ring, nring, addr_of, pre_step=None):
        a = self.a
        NF = 5*nk; D = nring
        def issue(f):
            k, T = divmod(f, 5); r = ring + 4*(f % nring); av, off = addr_of(k)
            a.ds(f"ds_read_b64_tr_b16 v[{r}:{r+1}], v{av} offset:{off + T*32}", f"w{f}")
            a.ds(f"ds_read_b64_tr_b16 v[{r+2}:{r+3}], v{av} offset:{off + 2560 + T*32}", f"w{f}")
        issued = 0
        for f in range(NF):
            k, T = divmod(f, 5); r = ring + 4*(f % nring)
            lim = NF
            if T == 0 and pre_step: lim = pre_step(k, "pre")
            if f == 0:
                while issued < min(D, NF): issue(issued); issued += 1
            a.wait(ds=f"w{f}")
            a(f"v_mfma_f32_16x16x32_bf16 v[{acc+4*T}:{acc+4*T+3}], v[{r}:{r+3}], v[{xreg+4*k}:{xreg+4*k+3}], " + ("0" if k == 0 else f"v[{acc+4*T}:{acc+4*T+3}]"))
            nxt = f + D
            if nxt < NF:
                if nxt % 5 == 0 and pre_step: pre_step(nxt // 5, "issue")
                issue(nxt); issued += 1

    def load_batch(self, loads, regs, accv, tag):
        a = self.a
        a.wait(vm=tag)
        self.check_frags(regs, accv, True)
        ok = a.newlabel("bok"); lp = a.newlabel("bretry")
        a(f"v_cmp_eq_u32 vcc, -1, v{accv}\ns_cbranch_vccz {ok}")
        a.label(lp)
        for ld in loads: a(ld)
        a("s_waitcnt vmcnt(0)")
        self.check_frags(regs, accv, True)
        a(f"v_cmp_eq_u32 vcc, -1, v{accv}")
        self.spin_tail(lp)
        a.label(ok)

    def probe(self, voff, soff):
        a = self.a
        lp = a.newlabel("probe")
        a.label(lp)
        a(f"buffer_load_dword v15, v{voff}, s[{R_WS}:{R_WS+3}], s{soff} offen sc1")
        a.wait_vm0()
        a("v_cmp_eq_u32 vcc, -1, v15")
        self.spin_tail(lp)

    def w2_block(self, q_s, lds_base, q0, tag, optional):
        a = self.a
        a(f"""s_and_b32 s92, s{q_s}, 1
              s_mul_i32 s92, s92, 24
              s_lshr_b32 s93, s{q_s}, 1
              s_add_u32 s92, s92, s93
              s_mul_i32 s92, s92, 40960
              s_add_u32 s92, s92, s{sJ160}
              s_mul_i32 s93, s{q_s}, 5120
              s_add_u32 s93, s93, {(lds_base - q0*5120) & 0xffffffff}""")
        self.n80_block(R_W2, 93, 92, tag, optional)

    def p3(self):
        a = self.a
        ACC, X, WR, X1 = 16, 36, 76, 84
        a(f"s_cmp_ge_u32 s{sW}, 6\ns_cbranch_scc1 L_skip_tab")
        a("s_waitcnt vmcnt(3)")
        a(f"s_cmp_eq_u32 s{sW}, 5\ns_cselect_b32 s86, 40, 64\nv_cmp_gt_u32 s[88:89], s86, v{vL}\ns_mov_b64 exec, s[88:89]".replace("\ns_mov_b64 exec", "\ns_nop 1\ns_mov_b64 exec"))
        chk = f"""v_cmp_ne_u32 vcc, s{sTAG}, v89
              v_cmp_ne_u32 s[86:87], s{sTAG}, v91
              s_or_b64 vcc, vcc, s[86:87]
              v_cmp_ne_u32 s[86:87], s{sTAG}, v93
              s_or_b64 vcc, vcc, s[86:87]
              v_cmp_ne_u32 s[86:87], s{sTAG}, v95
              s_or_b64 vcc, vcc, s[86:87]"""
        a(chk); a("s_cbranch_vccz L_tabok")
        a.label("L_tabspin")
        a(f"buffer_load_dwordx4 v[88:91], v{vL16}, s[{R_WS}:{R_WS+3}], s64 offen sc1\nbuffer_load_dwordx4 v[92:95], v{vL16}, s[{R_WS}:{R_WS+3}], s65 offen sc1\ns_waitcnt vmcnt(0)")
        a(chk); self.spin_tail("L_tabspin")
        a.label("L_tabok")
        a(f"s_cmp_eq_u32 s{sW}, 5\ns_cbranch_scc1 L_tab5")
        a(f"""v_add_f32 v88, 1.0, v88
              v_add_f32 v90, 1.0, v90
              v_cvt_pk_bf16_f32 v88, v88, v90
              v_cvt_pk_bf16_f32 v89, v92, v94
              s_lshl_b32 s86, s{sW}, 8
              s_add_u32 s86, s86, {TA2}
              v_lshl_add_u32 v90, v{vL}, 2, s86""")
        a.ds("ds_write_b32 v90, v88"); a.ds("ds_write_b32 v90, v89 offset:1280")
        a("s_branch L_tabdone")
        a.label("L_tab5")
        a(f"v_mov_b32 v89, v90\nv_mov_b32 v93, v94\nv_lshlrev_b32 v90, 3, v{vL}\nv_add_u32 v90, {TGA}, v90")
        a("ds_write_b64 v90, v[88:89]\nds_write_b64 v90, v[92:93] offset:320")
        a.label("L_tabdone")
        a("s_mov_b64 exec, -1")
        a.label("L_skip_tab")
        a(f"""s_and_b32 s84, s{sW}, 3
              s_lshr_b32 s85, s{sW}, 2
              s_mul_i32 s86, s84, 20480
              s_add_u32 s86, s86, s{sGB}
              s_mul_i32 s87, s85, 10240
              s_add_u32 s87, s87, s86
              s_mul_i32 s88, s85, 51200
              v_add_u32 v8, s88, v{vTR}
              v_and_b32 v9, 3, v{vL}
              v_mul_u32_u24 v9, 5, v9
              v_bfe_u32 v10, v{vL}, 2, 2
              v_mul_u32_u24 v10, 20, v10
              s_mul_i32 s88, s85, 80
              s_add_u32 s88, s88, 4
              v_add3_u32 v9, v9, v10, s88
              v_lshrrev_b32 v10, 1, v9
              v_lshlrev_b32 v10, 8, v10
              v_and_b32 v9, 1, v9
              v_lshl_add_u32 v9, v9, 3, v10
              v_add_u32 v9, 244, v9
              v_add_u32 v10, 4096, v{vL16}
              v_add_u32 v11, 8192, v{vL16}""")
        a.wait0()
        a("s_barrier")
        self.stamp("p3 start")
        self.probe(9, 86)
        self.stamp("o probed")
        loads = [f"buffer_load_dwordx4 v[{X+4*k}:{X+4*k+3}], v{(vL16, 10, 11)[k // 4]}, s[{R_WS}:{R_WS+3}], s87 offen offset:{(k % 4)*1024} sc1" for k in range(10)]
        batches = [(0, 3), (3, 6), (6, 10)]
        for bi, (k0, k1) in enumerate(batches):
            for k in range(k0, k1): a.vm(loads[k], f"xb{bi}")
        self.w2_block(sW, RING, 0, "w2a", False)
        def pre(k, what):
            if what == "pre":
                for bi, (k0, k1) in enumerate(batches):
                    if k == k0: self.load_batch(loads[k0:k1], [X+4*q for q in range(k0, k1)], 12, f"xb{bi}")
        self.n80_gemm(10, X, ACC, WR, 4, lambda k: (8, k*5120), pre)
        self.stamp("p3 gemm")
        a(f"""v_and_b32 v9, 15, v{vL}
              v_lshrrev_b32 v10, 4, v{vL}
              v_mul_u32_u24 v12, 1280, v9
              v_lshl_add_u32 v12, v10, 3, v12
              s_lshl_b32 s88, s{sG}, 2
              s_add_u32 s88, s88, s84
              s_mul_i32 s88, s88, {16*1280}
              s_add_u32 s88, s88, s{sJ160}
              s_mul_i32 s89, s84, 5120
              s_add_u32 s89, s89, {UREG}
              v_add_u32 v13, s89, v{vL16}
              v_lshlrev_b32 v14, 4, v10
              v_add_u32 v14, {TGA}, v14
              v_lshlrev_b32 v11, 3, v10
              s_add_u32 s89, s{sJ160}, {TA2}
              v_add_u32 v11, s89, v11
              v_lshrrev_b32 v8, 1, v10
              v_lshlrev_b32 v8, 8, v8
              v_lshl_add_u32 v8, v9, 4, v8
              v_and_b32 v10, 1, v10
              v_lshl_add_u32 v8, v10, 3, v8
              s_mul_i32 s89, s{sJ}, 2560
              s_add_u32 s86, s86, s89
              s_add_u32 s86, s86, {XA_OFF}
              v_lshlrev_b32 v9, 7, v9
              s_lshl_b32 s87, s84, 11
              s_add_u32 s87, s87, s{sGB}
              s_lshl_b32 s89, s{sJ}, 1
              s_add_u32 s89, s89, s85
              s_lshl_b32 s89, s89, 3
              s_add_u32 s87, s87, s89
              s_add_u32 s87, s87, {ST_OFF}""")
        a("s_cmp_eq_u32 s85, 1\ns_cbranch_scc1 L_p3_b1")
        save = (list(a.vmq), list(a.dsq))
        for b in range(2):
            own = (0, 1, 2) if b == 0 else (3, 4); snd = (3, 4) if b == 0 else (0, 1, 2)
            if b == 1: a.label("L_p3_b1"); a.vmq, a.dsq = list(save[0]), list(save[1])
            XR_, GA, A2, PT = 36, 44, 56, 64
            for i, T in enumerate(own): a.vm(f"buffer_load_dwordx2 v[{XR_+2*i}:{XR_+2*i+1}], v12, s[{R_X}:{R_X+3}], s88 offen offset:{32*T}", "res")
            for i, T in enumerate(own):
                a.ds(f"ds_read_b128 v[{GA+4*i}:{GA+4*i+3}], v14 offset:{64*T}", "tb")
                a.ds(f"ds_read_b64 v[{A2+2*i}:{A2+2*i+1}], v11 offset:{32*T}", "tb")
            a("s_barrier")
            for T in snd: a.ds(f"ds_write_b128 v13, v[{ACC+4*T}:{ACC+4*T+3}] offset:{1024*T}")
            a.wait_ds0()
            a("s_barrier")
            for i, T in enumerate(own): a.ds(f"ds_read_b128 v[{PT+4*i}:{PT+4*i+3}], v13 offset:{1024*T}", f"pt{i}")
            a.wait(vm="res")
            st = []
            for i, T in enumerate(own):
                a.wait(ds=f"pt{i}")
                for r in range(4):
                    x1 = X1 + 4*i + r; src = XR_ + 2*i + r // 2
                    a(f"v_add_f32 v{PT+4*i+r}, v{PT+4*i+r}, v{ACC+4*T+r}")
                    a(f"v_lshlrev_b32 v{x1}, 16, v{src}" if r % 2 == 0 else f"v_and_b32 v{x1}, 0xffff0000, v{src}")
                    a(f"v_fmac_f32 v{x1}, v{GA+4*i+r}, v{PT+4*i+r}")
                for r in range(4):
                    src = A2 + 2*i + r // 2
                    a(f"v_lshlrev_b32 v{PT+4*i+r}, 16, v{src}" if r % 2 == 0 else f"v_and_b32 v{PT+4*i+r}, 0xffff0000, v{src}")
                    a(f"v_mul_f32 v{PT+4*i+r}, v{PT+4*i+r}, v{X1+4*i+r}")
                a(f"v_cvt_pk_bf16_f32 v{PT+4*i}, v{PT+4*i}, v{PT+4*i+1}\nv_cvt_pk_bf16_f32 v{PT+4*i+1}, v{PT+4*i+2}, v{PT+4*i+3}")
                st.append(f"buffer_store_dwordx2 v[{PT+4*i}:{PT+4*i+1}], v8, s[{R_WS}:{R_WS+3}], s86 offen offset:{512*T}")
            self.pub_stores(st, "xast")
            n = 4*len(own)
            a(f"v_add_f32 v16, v{X1}, v{X1+1}\nv_mul_f32 v17, v{X1}, v{X1}\nv_fmac_f32 v17, v{X1+1}, v{X1+1}")
            for e in range(2, n): a(f"v_add_f32 v16, v16, v{X1+e}\nv_fmac_f32 v17, v{X1+e}, v{X1+e}")
            self.reduce_g4_pair(16, 17, 18)
            a("s_mov_b64 exec, 0xffff")
            self.pub_stores([f"buffer_store_dwordx2 v[16:17], v9, s[{R_WS}:{R_WS+3}], s87 offen"], "xast")
            a("s_mov_b64 exec, -1")
            if b == 0: a("s_branch L_p3_done")
        a.label("L_p3_done")
        self.stamp("xa stored")

    def p4(self):
        a = self.a
        WFu, WSh = 96, 176
        AF, BF, AS, BS = 16, 20, 24, 28
        ACF, ACS, XR_, TMP = (32, 36), (40, 44), 48, 72
        a(f"""v_and_b32 v9, 15, v{vL}
              v_lshlrev_b32 v9, 7, v9
              v_lshrrev_b32 v10, 4, v{vL}
              v_lshl_add_u32 v9, v10, 5, v9
              s_lshl_b32 s86, s84, 11
              s_add_u32 s86, s86, s{sGB}
              s_add_u32 s86, s86, {ST_OFF}
              s_mul_i32 s87, s84, 20480
              s_mul_i32 s88, s85, 10240
              s_add_u32 s87, s87, s88
              s_add_u32 s88, s87, s{sGB}
              s_add_u32 s88, s88, {XA_OFF}""")
        a.label("L_stspin")
        a(f"buffer_load_dwordx4 v[32:35], v9, s[{R_WS}:{R_WS+3}], s86 offen sc1\nbuffer_load_dwordx4 v[36:39], v9, s[{R_WS}:{R_WS+3}], s86 offen offset:16 sc1")
        a.wait_vm0()
        a("v_max_u32 v10, v32, v34\nv_max3_u32 v10, v10, v36, v38\nv_cmp_eq_u32 vcc, -1, v10")
        self.spin_tail("L_stspin")
        self.stamp("st probed")
        def xa_dma(track):
            for k in range(10):
                a(f"s_add_u32 m0, s87, {1024*k}\ns_add_u32 s89, s88, {1024*k}")
                a.vm(f"buffer_load_dwordx4 v{vL16}, s[{R_WS}:{R_WS+3}], s89 offen sc1 lds", "xa", track=track)
        xa_dma(True)
        a(f"""v_add_f32 v32, v32, v34
              v_add_f32 v33, v33, v35
              v_add_f32 v36, v36, v38
              v_add_f32 v37, v37, v39
              v_add_f32 v32, v32, v36
              v_add_f32 v33, v33, v37""")
        self.reduce_g4_pair(32, 33, 34)
        a(f"""v_mul_f32 v32, {hex(f2u(1/640))}, v32
              v_mul_f32 v33, {hex(f2u(1/640))}, v33
              v_fma_f32 v33, -v32, v32, v33
              v_max_f32 v33, 0, v33
              v_add_f32 v33, {hex(f2u(1e-5))}, v33
              v_rsq_f32 v34, v33
              v_and_b32 v9, 15, v{vL}
              v_mul_f32_e64 v35, -v32, v34
              s_lshl_b32 s89, s84, 7
              s_add_u32 s89, s89, {TRM}
              v_lshl_add_u32 v10, v9, 3, s89""")
        a.ds("ds_write_b64 v10, v[34:35]")
        a(f"""v_lshrrev_b32 v10, 3, v9
              v_mul_u32_u24 v10, 1280, v10
              v_lshrrev_b32 v11, 4, v{vL}
              v_lshl_add_u32 v10, v11, 4, v10
              v_add_u32 v10, {TA2}, v10""")
        for k in range(20):
            if k == 0:
                for q in range(4): a.ds(f"ds_read_b128 v[{XR_+4*q}:{XR_+4*q+3}], v10 offset:{64*q}", f"ab{q}")
            a.wait(ds=f"ab{k}")
            r = XR_ + 4*(k % 4)
            a(f"v_mfma_f32_16x16x32_bf16 v[{AF}:{AF+3}], v[{WFu+4*k}:{WFu+4*k+3}], v[{r}:{r+3}], " + ("0" if k == 0 else f"v[{AF}:{AF+3}]"))
            a(f"v_mfma_f32_16x16x32_bf16 v[{AS}:{AS+3}], v[{WSh+4*k}:{WSh+4*k+3}], v[{r}:{r+3}], " + ("0" if k == 0 else f"v[{AS}:{AS+3}]"))
            if k + 4 < 20: a.ds(f"ds_read_b128 v[{r}:{r+3}], v10 offset:{64*(k+4)}", f"ab{k+4}")
        a(f"""s_and_b32 s90, s{sW}, 1
              s_mul_i32 s91, s90, 40960
              v_add_u32 v12, s91, v{vL16}
              s_xor_b32 s91, s91, 40960
              v_add_u32 v13, s91, v{vL16}
              s_lshl_b32 s91, s90, 8
              s_add_u32 s91, s91, {TRM}
              v_lshl_add_u32 v14, v9, 3, s91
              v_xor_b32 v15, 256, v14
              s_lshr_b32 s91, s{sW}, 1
              s_mul_i32 s91, s91, 3
              s_mul_i32 s92, s{sJ}, 12
              s_add_u32 s91, s91, s92
              s_add_u32 s91, s91, 1
              s_lshl_b32 s91, s91, 9
              s_add_u32 s91, s91, s{sGB}
              s_add_u32 s91, s91, {H1_OFF}
              s_mul_i32 s92, s90, {2*49152}
              s_add_u32 s94, s91, s92
              s_lshl_b32 s93, s90, 10
              s_sub_u32 s93, s93, 512
              s_add_u32 s95, s94, s93
              s_xor_b32 s92, s92, {2*49152}
              s_add_u32 s91, s91, s92
              s_add_u32 s91, s91, s93""")
        assert TRM % 512 == 0
        for (A_, B_) in ((AF, BF), (AS, BS)):
            for r in range(4): a(f"v_mov_b32 v{B_+r}, v{A_+r}")
            for r in range(4): a(f"v_mov_b32_dpp v{B_+r}, v{A_+r} row_ror:8 row_mask:0xf bank_mask:0x3")
            for r in range(4): a(f"v_mov_b32_dpp v{A_+r}, v{A_+r} row_ror:8 row_mask:0xf bank_mask:0xc")
        a(f"v_add_u32 v10, s87, v{vL16}")
        a.wait(vm="xa")
        self.stamp("xa landed")
        def verify():
            for h in range(2):
                for q in range(5): a.ds(f"ds_read_b128 v[{XR_+4*q}:{XR_+4*q+3}], v10 offset:{1024*(5*h+q)}")
                a.wait_ds0()
                self.check_frags([XR_+4*q for q in range(5)], 11, h == 0)
            a("v_cmp_eq_u32 vcc, -1, v11")
        verify()
        a("s_cbranch_vccz L_xaok")
        a.label("L_xaretry")
        xa_dma(False); a("s_waitcnt vmcnt(0)"); verify()
        self.spin_tail("L_xaretry")
        a.label("L_xaok")
        a("s_barrier")
        self.stamp("p4 start")
        a(f"s_cmp_ge_u32 s{sW}, 6\ns_cbranch_scc1 L_skip_w2b\ns_add_u32 s86, s{sW}, 8\ns_mov_b32 s87, {RING}\ns_cmp_lt_u32 s{sW}, 2\ns_cselect_b32 s87, s87, {UREG - 10*5120}")
        a(f"""s_and_b32 s92, s86, 1
              s_mul_i32 s92, s92, 24
              s_lshr_b32 s93, s86, 1
              s_add_u32 s92, s92, s93
              s_mul_i32 s92, s92, 40960
              s_add_u32 s92, s92, s{sJ160}
              s_mul_i32 s93, s86, 5120
              s_add_u32 s93, s93, s87""")
        self.n80_block(R_W2, 93, 92, "w2b", True)
        a.label("L_skip_w2b")
        NR = 6
        def xread(n):
            i, k = divmod(n, 20); r = XR_ + 4*(n % NR)
            a.ds(f"ds_read_b128 v[{r}:{r+3}], v{12 if i < 2 else 13} offset:{(i & 1)*20480 + k*1024}", f"x{n}")
        def epi(i):
            L = []; RM = 8 + 2*(i & 1)
            tiles = [(ACF[i & 1], AF, BF, 95 if i < 2 else 91)] + ([(ACS[i & 1], AS, BS, 94)] if i < 2 else [])
            for ti, (C, A_, B_, so) in enumerate(tiles):
                t = TMP + 4*ti
                for r in range(4): L.append(f"v_fma_f32 v{t+r}, v{RM+1}, v{A_+r}, v{B_+r}")
                for r in range(4): L.append(f"v_fma_f32 v{C+r}, v{RM}, v{C+r}, v{t+r}")
                for r in range(4): L.append(f"v_mul_f32 v{t+r}, {hex(f2u(-math.log2(math.e)))}, v{C+r}")
                for r in range(4): L.append(f"v_exp_f32 v{t+r}, v{t+r}")
                for r in range(4): L.append(f"v_add_f32 v{t+r}, 1.0, v{t+r}")
                for r in range(4): L.append(f"v_rcp_f32 v{t+r}, v{t+r}")
                for r in range(4): L.append(f"v_mul_f32 v{C+r}, v{C+r}, v{t+r}")
                L.append(f"v_cvt_pk_bf16_f32 v{t}, v{C}, v{C+1}"); L.append(f"v_cvt_pk_bf16_f32 v{t+1}, v{C+2}, v{C+3}")
                L.append(("st", f"s_add_u32 s86, s{so}, {(i & 1)*49152}", f"buffer_store_dwordx2 v[{t}:{t+1}], v80, s[{R_WS}:{R_WS+3}], s86 offen"))
            return L
        def emit(op):
            if isinstance(op, tuple): a(op[1]); self.pub_stores([op[2]], "h1st")
            else: a(op)
        a("v_mov_b32 v80, v8")
        for i in range(2): a.ds(f"ds_read_b64 v[{8+2*i}:{9+2*i}], v14 offset:{128*i}", f"rm{i}")
        for n in range(NR): xread(n)
        pend = []
        for n in range(80):
            i, k = divmod(n, 20); r = XR_ + 4*(n % NR)
            if k == 2 and i > 0:
                a.wait(ds=f"rm{i-1}"); pend = epi(i - 1)
            a.wait(ds=f"x{n}")
            C = ACF[i & 1]
            a(f"v_mfma_f32_16x16x32_bf16 v[{C}:{C+3}], v[{WFu+4*k}:{WFu+4*k+3}], v[{r}:{r+3}], " + ("0" if k == 0 else f"v[{C}:{C+3}]"))
            if i < 2:
                q = -(-len(pend) // max(1, 2*(19 - k))) if pend else 0
                for _ in range(min(q, 2)):
                    if pend: emit(pend.pop(0))
                C = ACS[i & 1]
                a(f"v_mfma_f32_16x16x32_bf16 v[{C}:{C+3}], v[{WSh+4*k}:{WSh+4*k+3}], v[{r}:{r+3}], " + ("0" if k == 0 else f"v[{C}:{C+3}]"))
            if n + NR < 80: xread(n + NR)
            q = -(-len(pend) // max(1, 19 - k)) if pend else 0
            for _ in range(q):
                if pend: emit(pend.pop(0))
            if k == 19:
                assert not pend
                if i in (1, 2): a.ds(f"ds_read_b64 v[{8+2*((i+1)&1)}:{9+2*((i+1)&1)}], v15 offset:{128*((i+1)&1)}", f"rm{i+1}")
        a.wait(ds="rm3")
        for op in epi(3): emit(op)
        self.stamp("h1 stored")

    def p5(self):
        a = self.a
        ACC, WR, X, X1 = 16, 36, 96, 84
        a("s_barrier")
        for i in range(2):
            a(f"s_add_u32 s86, s{sW}, {14 + 8*i}")
            self.w2_block(86, 0, 14, "w2c", False)
        a(f"""v_bfe_u32 v9, v{vL}, 3, 2
              v_mul_u32_u24 v9, 12, v9
              v_bfe_u32 v10, v{vL}, 1, 2
              v_mul_u32_u24 v10, 3, v10
              v_and_b32 v11, 1, v{vL}
              v_lshlrev_b32 v11, 1, v11
              v_add3_u32 v9, v9, v10, v11
              v_lshlrev_b32 v9, 9, v9
              v_add_u32 v9, 508, v9
              s_mul_i32 s86, s84, 49152
              s_mul_i32 s87, s85, 24576
              s_add_u32 s86, s86, s87
              s_add_u32 s86, s86, s{sGB}
              s_add_u32 s86, s86, {H1_OFF}
              s_mul_i32 s87, s85, 5120
              v_add_u32 v10, s87, v{vTR}
              v_add_u32 v11, {UREG}, v10
              v_add_u32 v12, 40960, v10""")
        self.stamp("p5 start")
        self.probe(9, 86)
        self.stamp("h1 probed")
        loads = []
        for k in range(24):
            loads.append(f"s_add_u32 s87, s86, {(k // 4)*4096}\nbuffer_load_dwordx4 v[{X+4*k}:{X+4*k+3}], v{vL16}, s[{R_WS}:{R_WS+3}], s87 offen offset:{(k % 4)*1024} sc1")
        batches = [(0, 3), (3, 8), (8, 16), (16, 24)]
        for bi, (k0, k1) in enumerate(batches):
            for k in range(k0, k1): a.vm(loads[k], f"hb{bi}")
        a("s_barrier")
        def addr_of(k):
            t = k if k < 15 else k - 15
            if t < 5: return (11, RING - UREG + t*10240)
            if t < 7: return (11, (t - 5)*10240)
            if t < 11: return (10, (t - 7)*10240)
            return (12, (t - 11)*10240)
        def refill(q0, n, tag):
            for i in range(-(-n // 8)):
                lb = a.newlabel("skip_rf"); part = (8*i + 8 > n)
                a(f"s_add_u32 s88, s{sW}, {q0 + 8*i}")
                if part: a(f"s_cmp_ge_u32 s88, {q0 + n}\ns_cbranch_scc1 {lb}")
                a(f"""s_mov_b32 s89, {(-44*5120) & 0xffffffff}
                      s_cmp_lt_u32 s88, 44
                      s_cselect_b32 s89, {(UREG - 40*5120) & 0xffffffff}, s89
                      s_cmp_lt_u32 s88, 40
                      s_cselect_b32 s89, {(RING - 30*5120) & 0xffffffff}, s89
                      s_and_b32 s92, s88, 1
                      s_mul_i32 s92, s92, 24
                      s_lshr_b32 s93, s88, 1
                      s_add_u32 s92, s92, s93
                      s_mul_i32 s92, s92, 40960
                      s_add_u32 s92, s92, s{sJ160}
                      s_mul_i32 s93, s88, 5120
                      s_add_u32 s93, s93, s89""")
                self.n80_block(R_W2, 93, 92, tag, part)
                a.label(lb)
        def pre(k, what):
            if what == "pre":
                for bi, (k0, k1) in enumerate(batches):
                    if k == k0: self.load_batch(loads[k0:k1], [X+4*q for q in range(k0, k1)], 13, f"hb{bi}")
                if k == 5: a("s_barrier"); refill(30, 8, "rf0")
                if k == 10: a("s_barrier"); refill(38, 10, "rf1")
            else:
                if k == 15: a.wait(vm="rf0"); a("s_barrier")
                if k == 19: a.wait_vm0(); a("s_barrier")
        self.n80_gemm(24, X, ACC, WR, 6, addr_of, pre)
        self.stamp("p5 gemm")
        a(f"""v_and_b32 v9, 15, v{vL}
              v_lshrrev_b32 v10, 4, v{vL}
              v_mul_u32_u24 v12, 1280, v9
              v_lshl_add_u32 v12, v10, 3, v12
              s_lshl_b32 s88, s{sG}, 2
              s_add_u32 s88, s88, s84
              s_mul_i32 s88, s88, {16*1280}
              s_add_u32 s88, s88, s{sJ160}
              s_mul_i32 s89, s84, 5120
              s_add_u32 s89, s89, 40960
              v_add_u32 v13, s89, v{vL16}
              v_lshlrev_b32 v14, 4, v10
              v_add_u32 v14, {TGB}, v14""")
        a("s_cmp_eq_u32 s85, 1\ns_cbranch_scc1 L_p5_b1")
        for b in range(2):
            own = (0, 1, 2) if b == 0 else (3, 4); snd = (3, 4) if b == 0 else (0, 1, 2)
            if b == 1: a.label("L_p5_b1"); a.vmq, a.dsq = [], []
            GB_, PT = 44, 64
            for T in snd: a.ds(f"ds_write_b128 v13, v[{ACC+4*T}:{ACC+4*T+3}] offset:{1024*T}")
            for i, T in enumerate(own): a.ds(f"ds_read_b128 v[{GB_+4*i}:{GB_+4*i+3}], v14 offset:{64*T}")
            a.wait_ds0()
            a("s_barrier")
            for i, T in enumerate(own): a.ds(f"ds_read_b128 v[{PT+4*i}:{PT+4*i+3}], v13 offset:{1024*T}", f"pt{i}")
            for i, T in enumerate(own):
                a.wait(ds=f"pt{i}")
                for r in range(4): a(f"v_add_f32 v{PT+4*i+r}, v{PT+4*i+r}, v{ACC+4*T+r}")
                for r in range(4): a(f"v_fmac_f32 v{X1+4*i+r}, v{GB_+4*i+r}, v{PT+4*i+r}")
                a(f"v_cvt_pk_bf16_f32 v{PT+4*i}, v{X1+4*i}, v{X1+4*i+1}\nv_cvt_pk_bf16_f32 v{PT+4*i+1}, v{X1+4*i+2}, v{X1+4*i+3}")
                a.vm(f"buffer_store_dwordx2 v[{PT+4*i}:{PT+4*i+1}], v12, s[{R_OUT}:{R_OUT+3}], s88 offen offset:{32*T}")
            if b == 0: a("s_branch L_p5_done")
        a.label("L_p5_done")
        self.stamp("out stored")

    def fallback(self):
        a = self.a
        O, S, K1, K2, Q2, V1, V2, Q1, CI = 16, 48, 64, 68, 70, 72, 76, 80, 40
        a.label("L_fallback")
        a.wait0()
        a(f"v_mov_b32 v38, 0xff800000\ns_mov_b32 s86, {KVD}\nv_subrev_u32 v8, {RING}, v8\nv_subrev_u32 v9, {RING}, v9\nv_subrev_u32 v10, {RING}, v10")
        a.label("L_fb1")
        a(f"buffer_load_dwordx4 v[{K1}:{K1+3}], v8, s[{R_WS}:{R_WS+3}], s86 offen sc1")
        a(f"buffer_load_dwordx2 v[{K2}:{K2+1}], v9, s[{R_WS}:{R_WS+3}], s86 offen sc1")
        a("s_waitcnt vmcnt(0)")
        a(f"v_mfma_f32_32x32x16_bf16 v[{S}:{S+15}], v[{K1}:{K1+3}], v[{Q1}:{Q1+3}], 0")
        a(f"v_mfma_f32_32x32x8bf16_1k v[{S}:{S+15}], v[{K2}:{K2+1}], v[{Q2}:{Q2+1}], v[{S}:{S+15}]")
        for e in range(8): a(f"v_max3_f32 v38, v38, v{S+2*e}, v{S+2*e+1}")
        a(f"s_add_u32 s86, s86, {KVT}\ns_cmp_lt_u32 s86, {KVD + 64*KVT}\ns_cbranch_scc1 L_fb1")
        a("v_mov_b32 v39, v38")
        a("v_permlane32_swap_b32 v38, v39")
        a("v_max_f32 v38, v38, v39")
        a("v_mov_b32 v84, v34\nv_mov_b32 v85, v35")
        a("v_sub_f32 v47, 0, v38")
        for e in range(15): a(f"v_mov_b32 v{32+e}, v47")
        for e in range(16): a(f"v_mov_b32 v{O+e}, 0")
        a(f"s_mov_b32 s86, {KVD}")
        a.label("L_fb2")
        a(f"buffer_load_dwordx4 v[{K1}:{K1+3}], v8, s[{R_WS}:{R_WS+3}], s86 offen sc1")
        a(f"buffer_load_dwordx2 v[{K2}:{K2+1}], v9, s[{R_WS}:{R_WS+3}], s86 offen sc1")
        a(f"buffer_load_dwordx4 v[{V1}:{V1+3}], v10, s[{R_WS}:{R_WS+3}], s86 offen sc1")
        a(f"buffer_load_dwordx4 v[{V2}:{V2+3}], v10, s[{R_WS}:{R_WS+3}], s86 offen offset:672 sc1")
        a("s_waitcnt vmcnt(0)")
        a(f"v_mfma_f32_32x32x16_bf16 v[{S}:{S+15}], v[{K1}:{K1+3}], v[{Q1}:{Q1+3}], v[32:47]")
        a(f"v_mfma_f32_32x32x8bf16_1k v[{S}:{S+15}], v[{K2}:{K2+1}], v[{Q2}:{Q2+1}], v[{S}:{S+15}]")
        for e in range(16): a(f"v_exp_f32 v{S+e}, v{S+e}")
        for e in range(8): a(f"v_cvt_pk_bf16_f32 v{S+(e//4)*8+e%4}, v{S+2*e}, v{S+2*e+1}")
        a(f"v_mfma_f32_32x32x16_bf16 v[{O}:{O+15}], v[{V1}:{V1+3}], v[{S}:{S+3}], v[{O}:{O+15}]")
        a(f"v_mfma_f32_32x32x16_bf16 v[{O}:{O+15}], v[{V2}:{V2+3}], v[{S+8}:{S+11}], v[{O}:{O+15}]")
        a(f"s_add_u32 s86, s86, {KVT}\ns_cmp_lt_u32 s86, {KVD + 64*KVT}\ns_nop 7\ns_cbranch_scc1 L_fb2")
        a("v_mov_b32 v34, v84\nv_mov_b32 v35, v85\ns_nop 7")
        a("s_branch L_att_norm")

    def pub_stores(self, stores, tag):
        a = self.a
        l1 = a.newlabel("far"); l2 = a.newlabel("pub")
        a(f"s_cmp_eq_u32 s{sSAME}, 1 ; same\ns_cbranch_scc0 {l1}")
        for st in stores: a.vm(st, tag)
        a(f"s_branch {l2}")
        a.label(l1)
        for st in stores: a.vm(st + " sc1", track=False)
        a.label(l2)

    def finish(self):
        a = self.a
        self.dump_stamps()
        a.label("L_end")
        a("s_endpgm")
        if self.stop != "q":
            self.fallback(); self.force_sets.append(("L_fallback",))

    def build(self):
        self.prologue()
        if self.stop == "q":
            self.dump([80, 81, 82, 83, 70, 71], 0)
        else:
            self.attention()
            if self.stop == "o":
                self.a.wait0(); self.dump(list(range(96, 104)) + list(range(172, 180)) + list(range(252, 256)), 0)
            else:
                self.p3()
                if self.stop != "xa":
                    self.p4()
                    if self.stop != "h1": self.p5()
        self.finish()
        lines, added, errs = fix_hazards(self.a.lines)
        for e in errs: print("ERR", e, file=sys.stderr)
        errs, info = check_all(lines, self.force_sets)
        for e in errs[:40]: print("ERR", e, file=sys.stderr)
        self.a.lines = lines
        hdr = open("cdna_kernels/" + NAME + ".s.ref").read().split("; Override launch")[0]
        out = hdr + "; @launch grid=(256,1,1) block=(512,1,1) lds=163840\n"
        out += f""".amdgcn_target "amdgcn-amd-amdhsa--gfx950"
.text
.globl {NAME}_kernel
.p2align 8
.type {NAME}_kernel,@function
{NAME}_kernel:
""" + self.a.text() + f""".section .rodata,"a"
.p2align 6
.amdhsa_kernel {NAME}_kernel
  .amdhsa_next_free_vgpr 256
  .amdhsa_next_free_sgpr 102
  .amdhsa_accum_offset 256
  .amdhsa_group_segment_fixed_size 0
  .amdhsa_kernarg_size 104
  .amdhsa_user_sgpr_count 2
  .amdhsa_user_sgpr_kernarg_segment_ptr 1
  .amdhsa_system_sgpr_workgroup_id_x 1
.end_amdhsa_kernel
"""
        if self.stamps: out = "; names=" + ",".join(self.names) + "\n" + out
        print(f"nops added: {added}, lines: {len(lines)}", file=sys.stderr)
        return out

if __name__ == "__main__":
    import argparse
    p = argparse.ArgumentParser()
    p.add_argument("-o", default="cdna_kernels/" + NAME + ".s")
    p.add_argument("--stop"); p.add_argument("--stamps", action="store_true")
    args = p.parse_args()
    open(args.o, "w").write(Gen(args.stop, args.stamps).build())
```
